```python
import torch

def _softmax(x, axis=-1):
    return torch.softmax(x, dim=axis)
def _gelu(x):
    return torch.nn.functional.gelu(x, approximate="tanh")
def _silu(x):
    return torch.nn.functional.silu(x)
def _sigmoid(x):
    return torch.sigmoid(x)
def _layernorm(x, axis=-1, eps=1e-5):
    m = x.mean(dim=axis, keepdim=True)
    v = x.var(dim=axis, keepdim=True, unbiased=False)
    return (x - m) / torch.sqrt(v + eps)
def _scatter_add(tgt, idx, src, axis=0):
    return tgt.clone().index_add_(axis, idx, src)
def _segment_sum(src, seg, n):
    out = torch.zeros((n,) + src.shape[1:], dtype=src.dtype)
    return out.index_add_(0, seg, src)
def _pad(x, pw):
    flat = tuple(v for pair in reversed(pw) for v in pair)
    return torch.nn.functional.pad(x, flat)

kernel_name = 'parallel_sum__gqa_block_cached__glu_gated_geglu__decode'

def setup_inputs():

    _w = (lambda a: (lambda t: t.to(torch.bfloat16) if t.is_floating_point() else t)(torch.as_tensor(a)))
    def _A_setup():
        B, Sq, D = 1, 1, 640
        Hq, Hkv, Sk, Dh = 32, 32, 8192, 192
        assert Hq % Hkv == 0, (Hq, Hkv)
        return {
            "x": _w((lambda *s: torch.randn(*s, dtype=torch.bfloat16) * 0.05)(B, Sq, D)),
            "k_cache": _w((lambda *s: torch.randn(*s, dtype=torch.bfloat16) * 1.6)(B, Hkv, Sk, Dh)),
            "v_cache": _w((lambda *s: torch.randn(*s, dtype=torch.bfloat16) * 0.8)(B, Hkv, Sk, Dh)),
            "wq": _w((lambda *s: torch.randn(*s, dtype=torch.bfloat16) * 1.6)(D, Hq * Dh) * (D ** -0.5)),
            "wo": _w((lambda *s: torch.randn(*s, dtype=torch.bfloat16) * 0.8)(Hq * Dh, D) * ((Hq * Dh) ** -0.5)),
        }
    _A_in = _A_setup()

    def _B_setup():
        B, S, Dm, Df = 1, 1, 640, 1536
        return {
            "x": _w((lambda *s: torch.randn(*s, dtype=torch.bfloat16) * 0.05)(B, S, Dm)),
            "w_gate": _w((lambda *s: torch.randn(*s, dtype=torch.bfloat16) * 0.4)(Dm, Df) * (Dm ** -0.5)),
            "w_up": _w((lambda *s: torch.randn(*s, dtype=torch.bfloat16) * 0.4)(Dm, Df) * (Dm ** -0.5)),
            "w_down": _w((lambda *s: torch.randn(*s, dtype=torch.bfloat16) * 0.4)(Df, Dm) * (Df ** -0.5)),
        }
    _B_in = _B_setup()

    return {
        "A_x": _A_in["x"],
        "A_k_cache": _A_in["k_cache"],
        "A_v_cache": _A_in["v_cache"],
        "A_wq": _A_in["wq"],
        "A_wo": _A_in["wo"],
        "B_x": _B_in["x"],
        "B_w_gate": _B_in["w_gate"],
        "B_w_up": _B_in["w_up"],
        "B_w_down": _B_in["w_down"],
    }

def reference(A_x, A_k_cache, A_v_cache, A_wq, A_wo, B_x, B_w_gate, B_w_up, B_w_down):
    def _A_ref(x, k_cache, v_cache, wq, wo):
        B, Sq, D = x.shape
        Hq, Dh = 32, 192
        Hkv = k_cache.shape[1]
        rep = Hq // Hkv
        q = (lambda x, *d: x.permute(*d))((x @ wq).reshape(B, Sq, Hq, Dh), 0, 2, 1, 3)
        k = (lambda x, n, axis: torch.repeat_interleave(x, n, dim=axis))(k_cache, rep, axis=1)
        v = (lambda x, n, axis: torch.repeat_interleave(x, n, dim=axis))(v_cache, rep, axis=1)
        scores = torch.einsum("bhqd,bhkd->bhqk", q, k) * (Dh ** -0.5)
        p = _softmax(scores, axis=-1)
        o = torch.einsum("bhqk,bhkd->bhqd", p, v)
        return (lambda x, *d: x.permute(*d))(o, 0, 2, 1, 3).reshape(B, Sq, Hq * Dh) @ wo

    def _B_ref(x, w_gate, w_up, w_down):
        g = torch.einsum("bsd,df->bsf", x, w_gate)
        u = torch.einsum("bsd,df->bsf", x, w_up)
        h = _gelu(g) * u
        return torch.einsum("bsf,fd->bsd", h, w_down)

    x = A_x
    xn = _layernorm(x, axis=-1)
    return x + _A_ref(xn, A_k_cache, A_v_cache, A_wq, A_wo) + _B_ref(xn, B_w_gate, B_w_up, B_w_down)
```

```python
import re

TRANS = ('v_exp_f32', 'v_log_f32', 'v_rcp_f32', 'v_rsq_f32', 'v_sqrt_f32', 'v_sin_f32', 'v_cos_f32')

def regs_of(tok):
    tok = tok.strip()
    tok = tok.lstrip('-')
    m = re.fullmatch(r'abs\((.*)\)', tok)
    if m: tok = m.group(1)
    m = re.fullmatch(r'([vsa])(\d+)', tok)
    if m: return {(m.group(1), int(m.group(2)))}
    m = re.fullmatch(r'([vsa])\[(\d+):(\d+)\]', tok)
    if m: return {(m.group(1), i) for i in range(int(m.group(2)), int(m.group(3)) + 1)}
    if tok == 'vcc': return {('s', 'vcc')}
    if tok == 'exec': return {('s', 'exec')}
    if tok == 'm0': return {('s', 'm0')}
    return set()

class Ins:
    def __init__(self, text):
        self.text = text
        t = text.split(';')[0].strip()
        self.label = t.endswith(':')
        self.op = t.split()[0] if t else ''
        rest = t[len(self.op):].strip()
        ops, depth, cur = [], 0, ''
        for ch in rest:
            if ch in '[(': depth += 1
            if ch in '])': depth -= 1
            if ch == ',' and depth == 0:
                ops.append(cur.strip()); cur = ''
            else: cur += ch
        if cur.strip(): ops.append(cur.strip())
        self.mods = ''
        if ops:
            parts = ops[-1].split(None, 1)
            ops[-1] = parts[0]
            self.mods = parts[1] if len(parts) > 1 else ''
        self.ops = ops
        op = self.op
        self.valu = op.startswith('v_') and not self.label
        self.vmem = op.startswith(('buffer_', 'global_'))
        self.ds = op.startswith('ds_')
        self.salu = op.startswith('s_') and not self.label
        self.dpp = op.endswith('_dpp')
        self.perml = op.startswith('v_permlane')
        self.dot = op.startswith('v_dot')
        self.trans = op.startswith(TRANS)
        self.rdlane = op.startswith(('v_readlane', 'v_readfirstlane'))
        self.w, self.r = set(), set()
        R = [regs_of(o) for o in ops]
        if self.valu:
            if self.perml:
                self.w = R[0] | R[1]; self.r = R[0] | R[1]
            else:
                self.w = set(R[0])
                for x in R[1:]: self.r |= x
                if op.startswith(('v_dot2c', 'v_fmac', 'v_writelane')) or self.dpp: self.r |= R[0]
                if op.startswith('v_cmpx'): self.w.add(('s', 'exec'))
        elif self.vmem:
            lds = ' lds' in (' ' + self.mods)
            if 'load' in op and not lds:
                self.w = set(R[0])
                for x in R[1:]: self.r |= x
            else:
                for x in R: self.r |= x
            self.ldsdma = lds
            self.wide_store = ('store' in op) and op.endswith(('x3', 'x4'))
            self.sdata = R[0] if op.startswith('buffer_') else (R[1] if len(R) > 1 else set())
        elif self.ds:
            if 'read' in op or 'swizzle' in op or 'permute' in op:
                self.w = set(R[0])
                for x in R[1:]: self.r |= x
            else:
                for x in R: self.r |= x
        elif self.salu:
            if op.startswith(('s_cmp', 's_cbranch', 's_branch', 's_waitcnt', 's_barrier', 's_nop', 's_endpgm', 's_setprio', 's_sleep')):
                for x in R: self.r |= x
            elif R:
                self.w = set(R[0])
                for x in R[1:]: self.r |= x

    def states(self):
        if self.label or not self.op or self.op.startswith('.'): return 0
        if self.op == 's_nop': return int(self.ops[0]) + 1
        return 1

def need(p, c):
    n = 0
    vw = {x for x in p.w if x[0] == 'v'}
    sw = {x for x in p.w if x[0] == 's'}
    if p.valu:
        if c.valu and c.dpp and (vw & c.r): n = max(n, 2)
        if c.valu and c.perml and (vw & c.r): n = max(n, 2)
        if c.rdlane and (vw & c.r): n = max(n, 1)
        if p.trans and c.valu and (vw & c.r): n = max(n, 1)
        if p.dot and (vw & (c.r | c.w)):
            same = c.op.replace('_dpp', '') == p.op.replace('_dpp', '')
            if same:
                ab = set()
                for o in c.ops[1:3]: ab |= regs_of(o)
                if vw & ab: n = max(n, 3)
            else: n = max(n, 3)
        if sw:
            if c.valu and (sw & c.r): n = max(n, 4 if c.op.startswith(('v_readlane', 'v_writelane')) else 2)
            if c.valu and ('s', 'vcc') in sw and c.op.startswith(('v_cndmask', 'v_addc', 'v_div_fmas')): n = max(n, 4 if 'div' in c.op else 2)
            if c.vmem and (sw & c.r): n = max(n, 5)
            if ('s', 'exec') in sw:
                if c.dpp: n = max(n, 5)
                if c.rdlane or c.perml or c.op.startswith('v_writelane'): n = max(n, 4)
    if p.vmem and getattr(p, 'wide_store', False) and (p.sdata & c.w): n = max(n, 2)
    if p.salu and ('s', 'm0') in p.w and c.vmem and getattr(c, 'ldsdma', False): n = max(n, 1)
    return n

class Asm:
    def __init__(self): self.lines = []
    def __call__(self, text):
        for l in text.strip('\n').split('\n'):
            l = l.strip()
            if l: self.lines.append(l)
    def finish(self):
        out, hist = [], []
        for l in self.lines:
            c = Ins(l)
            if c.op and not c.label and not c.op.startswith('.'):
                dist, req = 0, 0
                for p in reversed(hist):
                    req = max(req, need(p, c) - dist)
                    dist += p.states()
                    if dist >= 6: break
                if req > 0:
                    nop = Ins(f's_nop {req - 1}')
                    out.append('    ' + nop.text); hist.append(nop)
            out.append(l if c.label else '    ' + l)
            hist.append(c)
            hist = hist[-12:]
        return '\n'.join(out)
```

```python
import sys, struct, json
from asmlib import Asm

NAME = 'parallel_sum__gqa_block_cached__glu_gated_geglu__decode'
def f2u(x): return '0x%08x' % struct.unpack('<I', struct.pack('<f', x))[0]

DEF = dict(kv='nt', w1='nt', w2='', D=8, init=2, win=2, stamps=0, spin=200000, outsc='', bar0=1, swin=None)

QP, GP, OX, FP, EP, ST = 0, 262144, 524288, 786432, 917504, 1048576
WS_USED = ST + 256 * 9 * 128
L_P1, L_X, L_Q, L_H, L_M, L_O, L_F, L_W, L_END = 0, 8192, 9472, 9856, 9984, 10240, 18432, 23040, 23040 + 32768

def gen(**kw):
    P = dict(DEF); P.update(kw)
    D = P['D']
    a = Asm()
    S, ACC = 24, 40
    Q = ACC
    SLOT = lambda i: 64 + 12 * (i % D)
    NV = 64 + 12 * D
    assert NV <= 168
    vr = lambda b, n: f'v[{b}:{b+n-1}]'
    def stamp(i):
        if P['stamps']: a(f's_memrealtime s[{76+2*i}:{77+2*i}]')
    def srd(d, ptr, size):
        a(f's_mov_b32 s{d}, s{ptr}\ns_mov_b32 s{d+1}, s{ptr+1}\ns_mov_b32 s{d+2}, {size}\ns_mov_b32 s{d+3}, 0x20000')
    K_, V_, W1_, X_, WS_, WO_, WD_, OUT_ = 40, 44, 48, 52, 56, 64, 68, 72
    sr = lambda d: f's[{d}:{d+3}]'
    def allred(v, t, op, bits=(0,1,2,3,4,5)):
        vs = v if isinstance(v, list) else [v]
        ts = t if isinstance(t, list) else [t]
        dp = {0: 'quad_perm:[1,0,3,2]', 1: 'quad_perm:[2,3,0,1]', 2: 'row_half_mirror', 3: 'row_ror:8'}
        for b in bits:
            if b < 4:
                for x in vs: a(f'{op}_dpp v{x}, v{x}, v{x} {dp[b]} row_mask:0xf bank_mask:0xf')
            else:
                n = 16 if b == 4 else 32
                for x, y in zip(vs, ts): a(f'v_mov_b32 v{y}, v{x}')
                for x, y in zip(vs, ts): a(f'v_permlane{n}_swap_b32 v{x}, v{y}')
                for x, y in zip(vs, ts): a(f'{op} v{x}, v{x}, v{y}')
    def tred24(dst):
        for t in range(3):
            for e in range(4): a(f'v_permlane32_swap_b32 v{ACC+t*8+e}, v{ACC+t*8+e+4}')
        for t in range(3):
            for e in (0, 2): a(f'v_pk_add_f32 {vr(ACC+t*8+e,2)}, {vr(ACC+t*8+e,2)}, {vr(ACC+t*8+e+4,2)}')
        for t in range(3):
            for e in range(2): a(f'v_permlane16_swap_b32 v{ACC+t*8+e}, v{ACC+t*8+e+2}')
        for t in range(3): a(f'v_pk_add_f32 {vr(ACC+t*8,2)}, {vr(ACC+t*8,2)}, {vr(ACC+t*8+2,2)}')
        for t in range(3): a(f'v_add_f32_dpp v{dst+t}, v{ACC+t*8}, v{ACC+t*8} row_ror:8 row_mask:0xf bank_mask:0x3')
        for t in range(3): a(f'v_add_f32_dpp v{dst+t}, v{ACC+t*8+1}, v{ACC+t*8+1} row_ror:8 row_mask:0xf bank_mask:0xc')
    def pv(slot, plo, phi):
        for j in range(12):
            a(f'v_dot2c_f32_bf16 v{ACC+2*j}, v{SLOT(slot)+j}, v{plo}')
            a(f'v_dot2c_f32_bf16 v{ACC+2*j+1}, v{SLOT(slot)+j}, v{phi}')
    def issue(n):
        g = n % 16
        if g == 0: so = 's10'
        else:
            a(f's_add_u32 s11, s10, {g*3072}'); so = 's11'
        for t in range(3):
            a(f'buffer_load_dwordx4 {vr(SLOT(n)+4*t,4)}, v2, {sr(K_ if n < 16 else V_)}, {so} offen offset:{t*128} {P["kv"]}')
    def vm_for(n): return 3 * (min(n + D - 1, 31) - n) + (4 if n <= D - 1 else 0)
    pk = lambda d, x, y: a(f'v_pk_add_f32 {vr(d,2)}, {vr(x,2)}, {vr(y,2)}\nv_pk_add_f32 {vr(d+2,2)}, {vr(x+2,2)}, {vr(y+2,2)}')
    bar = lambda: a('s_barrier')

    a('s_cmp_ge_u32 s2, 256\ns_cbranch_scc1 L_end')
    a('s_load_dwordx16 s[16:31], s[0:1], 0\ns_load_dwordx8 s[32:39], s[0:1], 64')
    stamp(0)
    a('v_lshrrev_b32 v4, 6, v0\nv_and_b32 v1, 63, v0')
    a('s_and_b32 s4, s2, 31\ns_lshr_b32 s5, s2, 5')
    a('v_readfirstlane_b32 s6, v4')
    a('v_lshrrev_b32 v4, 3, v1\nv_and_b32 v5, 7, v1\nv_lshlrev_b32 v5, 4, v5')
    a('v_lshlrev_b32 v6, 2, v1\nv_lshlrev_b32 v0, 4, v1')
    a('s_lshl_b32 s3, s4, 3\ns_add_u32 s3, s3, s5')
    a('s_cmp_eq_u32 s6, 8\ns_cbranch_scc1 L_ctl')
    a('s_lshl_b32 s7, s6, 4\ns_max_u32 s8, s7, 8\ns_sub_u32 s8, s8, 8')
    a('s_and_b32 s9, s4, 15\ns_mul_i32 s9, s9, 40\ns_add_u32 s8, s8, s9')
    a('s_mul_i32 s9, s5, 80\ns_add_u32 s9, s9, s7\ns_sub_u32 s9, s9, 48')
    a('s_cmp_lt_u32 s6, 3\ns_cselect_b32 s8, s8, s9')
    a('s_cselect_b32 s12, 1, 4\ns_cselect_b32 s13, s5, s4')
    a('s_mul_i32 s50, s12, 1966080\ns_mul_i32 s12, s12, 3072\ns_mov_b32 s51, 0x20000')
    a('s_mul_i32 s13, s13, 384\ns_mul_i32 s14, s8, s12\ns_add_u32 s14, s14, s13')
    a('s_lshl_b32 s15, s12, 3\ns_add_u32 s15, s15, s14')
    a('s_cmp_eq_u32 s6, 0\ns_cselect_b32 s13, 0x7ff00000, 0')
    a('v_mul_lo_u32 v7, s12, v4\nv_add_u32 v7, v7, v5\nv_or_b32 v8, s13, v7')
    a('v_mul_u32_u24 v2, 384, v4\nv_add_u32 v2, v2, v5')
    a('s_lshl_b32 s10, s5, 3\ns_add_u32 s10, s10, s6\ns_mul_i32 s10, s10, 49152')
    a('s_mul_i32 s11, s4, 3145728\ns_add_u32 s10, s10, s11')
    a(f's_mov_b32 s{K_+2}, 100663296\ns_mov_b32 s{K_+3}, 0x20000')
    a('s_cmp_lt_u32 s4, 16\ns_waitcnt lgkmcnt(0)')
    a('s_cselect_b32 s48, s28, s30\ns_cselect_b32 s49, s29, s31')
    a('s_cmp_lt_u32 s6, 3\ns_cselect_b32 s48, s48, s22\ns_cselect_b32 s49, s49, s23')
    for g in range(2):
        for t in range(3):
            a(f'buffer_load_dwordx4 {vr(SLOT(D-2+g)+4*t,4)}, v{7+g}, {sr(W1_)}, s{14+g} offen offset:{t*128} {P["w1"]}')
    a(f's_mov_b32 s{K_}, s18\ns_mov_b32 s{K_+1}, s19')
    if P['bar0']: bar()
    for g in range(P['init']): issue(g)
    srd(V_, 20, 100663296); srd(WS_, 38, WS_USED); srd(WO_, 24, 7864320); srd(OUT_, 34, 1280); srd(X_, 16, 1280)
    a(f's_add_u32 s60, s38, {EP}\ns_addc_u32 s61, s39, 0\ns_load_dword s62, s[60:61], 0')
    for j in range(24): a(f'v_mov_b32 v{ACC+j}, 0')
    a('v_add_u32 v8, s8, v4\nv_lshlrev_b32 v8, 1, v8')
    a('v_mul_u32_u24 v3, 26, v1\nv_lshrrev_b32 v3, 8, v3\nv_mul_u32_u24 v9, 1120, v3\nv_lshl_add_u32 v3, v1, 4, v9')
    a('v_cmp_lt_u32 vcc, 59, v1\nv_mov_b32 v9, 0x7ff00000\nv_cndmask_b32 v3, v3, v9, vcc')
    a('s_lshl_b32 s11, s6, 10\nv_add_u32 v9, s11, v0')
    bar()
    stamp(1)
    a(f'ds_read_u16 v10, v8 offset:{L_X}\nds_read_u16 v12, v8 offset:{L_X+16}\ns_waitcnt lgkmcnt(0)')
    a('v_lshlrev_b32 v11, 16, v10\nv_lshlrev_b32 v13, 16, v12')
    a(f's_waitcnt vmcnt({3*P["init"]+3})'); pv(D-2, 10, 11)
    a(f's_waitcnt vmcnt({3*P["init"]})'); pv(D-1, 12, 13)
    stamp(2)
    tred24(12)
    a(f'ds_write_b128 v9, v[12:15] offset:{L_P1}\ns_waitcnt lgkmcnt(0)')
    bar()
    for g in range(P['init'], D):
        if P['win'] is not None: a(f's_waitcnt vmcnt({3*(P["win"]-1)})')
        issue(g)
    a('s_mul_i32 s11, s4, 192\ns_mul_i32 s12, s6, 24\ns_add_u32 s11, s11, s12\ns_mul_i32 s11, s11, 1280')
    a('s_mul_i32 s12, s5, 160\ns_add_u32 s11, s11, s12')
    a(f's_lshl_b32 s13, s6, 12\ns_add_u32 s13, s13, {L_W}')
    if P['win'] is not None: a(f's_waitcnt vmcnt({3*(P["win"]-1)})')
    for i in range(4):
        a(f's_mov_b32 m0, s13\ns_add_u32 s13, s13, 1024')
        a(f'buffer_load_dwordx4 v3, {sr(WO_)}, s11 offen lds {P["w2"]}')
        if i < 3: a('s_add_u32 s11, s11, 7680')
    stamp(5)
    bar()
    stamp(6)
    for t in range(3): a(f'ds_read_b128 {vr(Q+4*t,4)}, v5 offset:{L_Q+128*t}')
    a('s_waitcnt lgkmcnt(0)')
    for g in range(16):
        a(f's_waitcnt vmcnt({vm_for(g)})')
        for j in range(4):
            for t in range(3):
                c = '0' if j == 0 else f'v{10+t}'
                a(f'v_dot2_f32_bf16 v{10+t}, v{SLOT(g)+4*t+j}, v{Q+4*t+j}, {c}')
        if P['swin'] is not None: a(f's_waitcnt vmcnt({3*(P["swin"]-1)})')
        issue(g + D)
        a(f'v_add_f32 v10, v10, v11\nv_add_f32 v{S+g}, v10, v12')
    stamp(7)
    allred([S+g for g in range(16)], None, 'v_add_f32', bits=(0,1,2))
    a(f's_mov_b32 s11, {f2u(192 ** -0.5)}')
    for g in range(0, 16, 2): a(f'v_cvt_pk_bf16_f32 v{S+g}, v{S+g}, v{S+g+1}')
    for g in range(0, 16, 2): a(f'v_and_b32 v{S+g+1}, 0xffff0000, v{S+g}\nv_lshlrev_b32 v{S+g}, 16, v{S+g}')
    for g in range(16): a(f'v_mul_f32 v{S+g}, s11, v{S+g}')
    for g in range(0, 16, 2): a(f'v_cvt_pk_bf16_f32 v{S+g}, v{S+g}, v{S+g+1}')
    for g in range(0, 16, 2): a(f'v_and_b32 v{S+g+1}, 0xffff0000, v{S+g}\nv_lshlrev_b32 v{S+g}, 16, v{S+g}')
    a(f'v_max3_f32 v10, v{S}, v{S+1}, v{S+2}\nv_max3_f32 v11, v{S+3}, v{S+4}, v{S+5}')
    a(f'v_max3_f32 v10, v10, v{S+6}, v{S+7}\nv_max3_f32 v11, v11, v{S+8}, v{S+9}')
    a(f'v_max3_f32 v10, v10, v{S+10}, v{S+11}\nv_max3_f32 v11, v11, v{S+12}, v{S+13}')
    a(f'v_max3_f32 v10, v10, v{S+14}, v{S+15}\nv_max_f32 v10, v10, v11')
    allred(10, 11, 'v_max_f32', bits=(3,4,5))
    a(f's_mov_b32 s11, {f2u(1.4426950408889634)}')
    a('v_mul_f32 v10, s11, v10')
    for g in range(16): a(f'v_fma_f32 v{S+g}, v{S+g}, s11, -v10')
    for g in range(16): a(f'v_exp_f32 v{S+g}, v{S+g}')
    for j in range(24): a(f'v_mov_b32 v{ACC+j}, 0')
    a(f'v_add_f32 v11, v{S}, v{S+1}\nv_add_f32 v12, v{S+2}, v{S+3}')
    for g in range(4, 16, 2): a(f'v_add_f32 v11, v11, v{S+g}\nv_add_f32 v12, v12, v{S+g+1}')
    a('v_add_f32 v11, v11, v12')
    for g in range(16): a(f'v_cvt_pk_bf16_f32 v{S+g}, v{S+g}, 0')
    allred(11, 12, 'v_add_f32', bits=(3,4,5))
    a(f's_lshl_b32 s11, s6, 3\nv_mov_b32 v9, s11\nds_write_b64 v9, v[10:11] offset:{L_M}')
    a('s_lshl_b32 s11, s6, 10')
    for t in range(3):
        a(f'v_lshrrev_b32 v9, 1, v5\nv_add3_u32 v9, v9, v4, {64*t if t < 2 else 64}')
        if t == 2: a('v_add_u32 v9, 64, v9')
        a(f'v_mul_u32_u24 v12, 171, v9\nv_lshrrev_b32 v12, 12, v12\nv_lshlrev_b32 v12, 5, v12')
        a(f'v_lshl_add_u32 v9, v9, 2, v12\nv_add_u32 v{20+t}, s11, v9')
    stamp(8)
    gst = 16 - D + 2
    assert (32 - D) % D + 2 < D
    WR = SLOT(32 - D)
    for g in range(16):
        a(f'v_lshlrev_b32 v9, 16, v{S+g}')
        a(f's_waitcnt vmcnt({vm_for(16+g)})')
        pv(16 + g, S+g, 9)
        if 16 + g + D < 32:
            if P['swin'] is not None: a(f's_waitcnt vmcnt({3*(P["swin"]-1)})')
            issue(16 + g + D)
        if g == gst:
            a(f's_lshl_b32 s11, s6, 12\nv_add_u32 v9, s11, v6')
            for r in range(24): a(f'ds_read_b32 v{WR+2+r}, v9 offset:{L_W+1024*(r//6)+160*(r%6)}')
            a('s_mov_b32 s11, 0x05040100\ns_mov_b32 s12, 0x07060302')
            a('v_mov_b32 v16, 0\nv_mov_b32 v17, 0\nv_mov_b32 v18, 0\nv_mov_b32 v19, 0')
            a('s_lshr_b32 s13, s4, 2\ns_mul_i32 s9, s13, 160\ns_lshl_b32 s14, s5, 5\ns_add_u32 s9, s9, s14')
            a(f's_mul_i32 s13, s13, 384\ns_lshl_b32 s14, s5, 6\ns_add_u32 s13, s13, s14\ns_add_u32 s14, s13, {FP}\ns_add_u32 s15, s14, 49152')
            a('v_and_b32 v9, 3, v1\nv_lshlrev_b32 v10, 2, v9\nv_lshrrev_b32 v11, 4, v1\nv_add_lshl_u32 v23, v10, v11, 1')
            a('v_lshrrev_b32 v7, 2, v1\nv_mul_u32_u24 v7, 3072, v7\nv_lshl_add_u32 v7, v9, 4, v7')
            a(f's_lshl_b32 s7, s4, 13\ns_lshl_b32 s8, s6, 10\ns_add_u32 s7, s7, s8\ns_add_u32 s7, s7, {OX}')
            a(f's_lshl_b32 s8, s6, 9\nv_lshl_add_u32 v3, v1, 3, s8\ns_mov_b32 s13, {P["spin"]}')
            a('s_waitcnt lgkmcnt(0)')
            for r in range(0, 24, 2):
                a(f'v_perm_b32 v{WR+r}, v{WR+3+r}, v{WR+2+r}, s11\nv_perm_b32 v{WR+r+1}, v{WR+3+r}, v{WR+2+r}, s12')
    stamp(9)
    tred24(12)
    for t in range(3): a(f'ds_write_b32 v{20+t}, v{12+t} offset:{L_O}')
    a('s_waitcnt lgkmcnt(0)')
    bar()
    a('L_poll2:')
    a(f'buffer_load_dwordx4 v[12:15], v0, {sr(WS_)}, s7 offen sc1')
    a('s_sub_u32 s13, s13, 1\ns_cbranch_scc1 L_poll2x')
    a('s_waitcnt vmcnt(0)')
    a('v_max3_u32 v9, v12, v13, v14\nv_max_u32 v9, v9, v15\nv_cmp_eq_u32 vcc, -1, v9\ns_cbranch_vccnz L_poll2')
    a('L_poll2x:')
    stamp(10)
    a('v_mov_b32_dpp v10, v12 row_newbcast:6 row_mask:0xf bank_mask:0x3\nv_mov_b32_dpp v11, v13 row_newbcast:6 row_mask:0xf bank_mask:0x3')
    a('v_mov_b32_dpp v10, v12 row_newbcast:14 row_mask:0xf bank_mask:0xc\nv_mov_b32_dpp v11, v13 row_newbcast:14 row_mask:0xf bank_mask:0xc')
    a('v_mov_b32 v9, v10')
    allred(9, 8, 'v_max_f32', bits=(3,4,5))
    a('v_sub_f32 v10, v10, v9\nv_exp_f32 v10, v10')
    for x in (11, 12, 13, 14, 15): a(f'v_mul_f32 v{x}, v{x}, v10')
    allred([11, 12, 13, 14, 15], [24, 25, 26, 27, 28], 'v_add_f32', bits=(3,4,5))
    a('v_rcp_f32 v11, v11')
    for x in (12, 13, 14, 15): a(f'v_mul_f32 v{x}, v{x}, v11')
    a('v_cvt_pk_bf16_f32 v12, v12, v13\nv_cvt_pk_bf16_f32 v13, v14, v15')
    for p in range(6):
        for c in range(2):
            r = 4*p + 2*c
            a(f'v_dot2c_f32_bf16_dpp v{16+2*c}, v{12+c}, v{WR+r} row_newbcast:{p} row_mask:0xf bank_mask:0xf')
            a(f'v_dot2c_f32_bf16_dpp v{17+2*c}, v{12+c}, v{WR+r+1} row_newbcast:{p} row_mask:0xf bank_mask:0xf')
    a(f'v_pk_add_f32 v[16:17], v[16:17], v[18:19]\nds_write_b64 v3, v[16:17] offset:{L_F}')
    a('s_xor_b32 s11, s4, s5\ns_and_b32 s11, s11, 3\ns_or_b32 s11, s11, s6\ns_cmp_lt_u32 s5, 5\ns_cselect_b32 s11, s11, 1')
    a('s_cmp_lg_u32 s11, 0\ns_waitcnt lgkmcnt(0)')
    bar()
    a('s_cbranch_scc1 L_fin')
    a(f'buffer_load_ushort v8, v23, {sr(X_)}, s9 offen\ns_mov_b32 s13, {P["spin"]}')
    a('L_poll3:')
    a(f'buffer_load_dwordx4 v[12:15], v7, {sr(WS_)}, s14 offen sc1')
    a(f'buffer_load_dwordx4 v[16:19], v7, {sr(WS_)}, s15 offen sc1')
    a('s_sub_u32 s13, s13, 1\ns_cbranch_scc1 L_poll3x')
    a('s_waitcnt vmcnt(0)')
    a('v_max3_u32 v10, v12, v13, v14\nv_max3_u32 v11, v15, v16, v17\nv_max3_u32 v10, v10, v18, v19\nv_max_u32 v10, v10, v11')
    a('v_cmp_eq_u32 vcc, -1, v10\ns_cbranch_vccnz L_poll3')
    a('L_poll3x:')
    stamp(11)
    pk(12, 12, 16)
    a('v_lshlrev_b32 v8, 16, v8')
    a('v_permlane32_swap_b32 v12, v14\nv_permlane32_swap_b32 v13, v15\nv_add_f32 v12, v12, v14\nv_add_f32 v13, v13, v15')
    a('v_permlane16_swap_b32 v12, v13\nv_add_f32 v12, v12, v13')
    a('v_add_f32_dpp v12, v12, v12 row_ror:4 row_mask:0xf bank_mask:0xf\nv_add_f32_dpp v12, v12, v12 row_ror:8 row_mask:0xf bank_mask:0xf')
    a('v_add_f32 v12, v12, v8\nv_cvt_pk_bf16_f32 v12, v12, v12')
    a('s_mov_b32 exec_lo, 0x000f000f\ns_mov_b32 exec_hi, 0x000f000f')
    a(f'buffer_store_short v12, v23, {sr(OUT_)}, s9 offen {P["outsc"]}')
    a('s_cmp_lg_u32 s2, 0\ns_cbranch_scc1 L_fin')
    a(f's_add_u32 s62, s62, 0x9e3779b1\nv_mov_b32 v9, s62\ns_mov_b32 s11, {EP}\ns_mov_b64 exec, 1')
    a(f'buffer_store_dword v9, off, {sr(WS_)}, s11 sc1')
    a('s_branch L_fin')
    a('L_ctl:')
    a('s_setprio 3')
    a(f's_mov_b32 s{X_+2}, 1280\ns_mov_b32 s{X_+3}, 0x20000')
    a('v_mov_b32 v20, -1\nv_mov_b32 v21, -1\nv_mov_b32 v22, -1\nv_mov_b32 v23, -1')
    a(f's_lshl_b32 s7, s4, 13\ns_lshl_b32 s12, s5, 7\ns_add_u32 s7, s7, s12\ns_add_u32 s7, s7, {OX}')
    a(f's_mul_i32 s8, s3, 384\ns_add_u32 s8, s8, {FP}')
    a('v_lshl_add_u32 v2, v4, 10, v5')
    a('s_waitcnt lgkmcnt(0)')
    a(f's_mov_b32 s{X_}, s16\ns_mov_b32 s{X_+1}, s17')
    for j in range(5): a(f'buffer_load_dword v{10+j}, v6, {sr(X_)}, 0 offen offset:{256*j}')
    srd(WS_, 38, WS_USED)
    a(f's_add_u32 s60, s38, {EP}\ns_addc_u32 s61, s39, 0\ns_load_dword s62, s[60:61], 0')
    a(f'buffer_store_dwordx4 v[20:23], v2, {sr(WS_)}, s7 offen sc1')
    a('s_mov_b64 exec, 0xffffff')
    a(f'buffer_store_dwordx4 v[20:23], v0, {sr(WS_)}, s8 offen sc1')
    a('s_mov_b64 exec, -1')
    if P['bar0']: bar()
    a(f'ds_write_b32 v6, v20 offset:{L_M}')
    srd(WD_, 32, 1966080)
    a('s_waitcnt vmcnt(2)')
    stamp(1)
    for j in range(5): a(f'v_lshlrev_b32 v{24+2*j}, 16, v{10+j}\nv_and_b32 v{25+2*j}, 0xffff0000, v{10+j}')
    a('v_add_f32 v17, v24, v25\nv_add_f32 v18, v26, v27')
    for j in range(2, 5): a(f'v_add_f32 v17, v17, v{24+2*j}\nv_add_f32 v18, v18, v{25+2*j}')
    a('v_add_f32 v17, v17, v18')
    allred(17, 18, 'v_add_f32')
    a(f'v_mul_f32 v17, {f2u(1/640)}, v17')
    for j in range(10): a(f'v_sub_f32 v{34+j}, v{24+j}, v17')
    a('v_mul_f32 v18, v34, v34\nv_mul_f32 v19, v35, v35')
    for j in range(1, 5): a(f'v_fmac_f32 v18, v{34+2*j}, v{34+2*j}\nv_fmac_f32 v19, v{35+2*j}, v{35+2*j}')
    a('v_add_f32 v18, v18, v19\nv_cvt_pk_bf16_f32 v17, v17, v17\nv_lshlrev_b32 v17, 16, v17')
    allred(18, 19, 'v_add_f32')
    a(f'v_mul_f32 v18, {f2u(1/640)}, v18')
    a('v_cvt_pk_bf16_f32 v18, v18, v18\nv_lshlrev_b32 v18, 16, v18')
    a(f'v_add_f32 v18, {f2u(1e-5)}, v18\nv_cvt_pk_bf16_f32 v18, v18, v18\nv_lshlrev_b32 v18, 16, v18')
    a('v_sqrt_f32 v18, v18')
    for j in range(10): a(f'v_sub_f32 v{24+j}, v{24+j}, v17')
    a('v_cvt_pk_bf16_f32 v18, v18, v18\nv_lshlrev_b32 v18, 16, v18\nv_rcp_f32 v19, v18')
    for j in range(5): a(f'v_cvt_pk_bf16_f32 v{10+j}, v{24+2*j}, v{25+2*j}')
    for j in range(5): a(f'v_lshlrev_b32 v{24+2*j}, 16, v{10+j}\nv_and_b32 v{25+2*j}, 0xffff0000, v{10+j}')
    for j in range(10): a(f'v_mul_f32 v{34+j}, v{24+j}, v19')
    for j in range(10): a(f'v_fma_f32 v{24+j}, -v{34+j}, v18, v{24+j}')
    for j in range(10): a(f'v_fmac_f32 v{34+j}, v{24+j}, v19')
    for j in range(5): a(f'v_cvt_pk_bf16_f32 v{10+j}, v{34+2*j}, v{35+2*j}')
    for j in range(5): a(f'ds_write_b32 v6, v{10+j} offset:{L_X+256*j}')
    a('s_waitcnt lgkmcnt(0)')
    bar()
    stamp(2)
    a('s_add_u32 s62, s62, 0x9e3779b1')
    a(f's_lshl_b32 s11, s3, 10\ns_add_u32 s11, s11, {QP}\ns_lshl_b32 s12, s2, 10\ns_add_u32 s12, s12, {GP}')
    a(f's_lshl_b32 s14, s4, 13\ns_add_u32 s14, s14, {QP}\ns_add_u32 s15, s14, 4096\ns_mov_b32 s13, {P["spin"]}')
    a('v_lshl_add_u32 v3, v4, 1, v5')
    a('s_waitcnt vmcnt(0)')
    bar()
    B = 64
    for u in range(8): a(f'ds_read_b128 {vr(B+4*u,4)}, v0 offset:{L_P1+1024*u}')
    a('s_waitcnt lgkmcnt(0)')
    pk(B+12, B+12, B+16); pk(B+20, B+20, B+24); pk(B, B, B+4); pk(B+12, B+12, B+28); pk(B, B, B+8); pk(B+12, B+12, B+20)
    a(f'v_mov_b32 v{B+3}, s62\nv_mov_b32 v{B+15}, s62')
    a(f'buffer_store_dwordx4 {vr(B+12,4)}, v0, {sr(WS_)}, s11 offen sc1')
    a(f'buffer_store_dwordx4 {vr(B,4)}, v0, {sr(WS_)}, s12 offen sc1')
    stamp(3)
    G = 96
    def tagcheck(lbl):
        a(f's_sub_u32 s13, s13, 1\ns_cbranch_scc1 {lbl}x\ns_waitcnt vmcnt(0)')
        for u in range(8): a(f'v_xor_b32 v{G+4*u+3}, s62, v{G+4*u+3}')
        a(f'v_or3_b32 v9, v{G+3}, v{G+7}, v{G+11}\nv_or3_b32 v10, v{G+15}, v{G+19}, v{G+23}')
        a(f'v_or3_b32 v9, v9, v{G+27}, v{G+31}\nv_or_b32 v9, v9, v10\nv_cmp_ne_u32 vcc, 0, v9\ns_cbranch_vccnz {lbl}')
        a(f'{lbl}x:')
    a('L_pollq:')
    for u in range(8): a(f'buffer_load_dwordx4 {vr(G+4*u,4)}, v0, {sr(WS_)}, s{14+u//4} offen offset:{1024*(u%4)} sc1')
    tagcheck('L_pollq')
    stamp(4)
    pk(G, G, G+4); pk(G+8, G+8, G+12); pk(G+16, G+16, G+20); pk(G+24, G+24, G+28)
    pk(G, G, G+8); pk(G+16, G+16, G+24); pk(G, G, G+16)
    a(f'v_cvt_pk_bf16_f32 v10, v{G}, v{G+1}\nv_cvt_pk_bf16_f32 v11, v{G+2}, v{G+2}')
    a(f'ds_write_b16 v3, v10 offset:{L_Q}\nds_write_b16_d16_hi v3, v10 offset:{L_Q+128}\nds_write_b16 v3, v11 offset:{L_Q+256}')
    a('s_waitcnt lgkmcnt(0)')
    bar()
    stamp(6)
    a(f's_lshr_b32 s14, s4, 2\ns_and_b32 s15, s4, 3\ns_lshl_b32 s11, s14, 15\ns_lshl_b32 s12, s15, 8')
    a(f's_add_u32 s11, s11, s12\ns_add_u32 s9, s11, {GP}\ns_mov_b32 s13, {P["spin"]}')
    a('v_lshrrev_b32 v7, 4, v1\nv_and_b32 v8, 15, v1\nv_lshlrev_b32 v8, 4, v8\nv_lshl_add_u32 v7, v7, 10, v8')
    a('L_pollg:')
    a('s_mov_b32 s11, s9')
    for u in range(8):
        a(f'buffer_load_dwordx4 {vr(G+4*u,4)}, v7, {sr(WS_)}, s11 offen sc1')
        if u < 7: a('s_add_u32 s11, s11, 4096')
    tagcheck('L_pollg')
    stamp(5)
    a('s_mul_i32 s11, s14, 192\ns_lshl_b32 s12, s15, 1\ns_add_u32 s11, s11, s12\ns_mul_i32 s11, s11, 1280')
    a('s_mul_i32 s12, s5, 160\ns_add_u32 s11, s11, s12')
    a('v_cmp_lt_u32 vcc, 39, v1\nv_mov_b32 v9, 0x7ff00000\nv_cndmask_b32 v8, v6, v9, vcc')
    WDR = 34
    for i in range(24):
        for e in range(2): a(f'buffer_load_dword v{WDR+2*i+e}, v8, {sr(WD_)}, s11 offen offset:{1280*e} {P["w2"]}')
        if i < 23: a('s_add_u32 s11, s11, 10240')
    pk(G, G, G+4); pk(G+8, G+8, G+12); pk(G+16, G+16, G+20); pk(G+24, G+24, G+28)
    pk(G, G, G+8); pk(G+16, G+16, G+24)
    gs, us = [G, G+1, G+2], [G+16, G+17, G+18]
    allred(gs + us, [G+4+i for i in range(6)], 'v_add_f32', bits=(4, 5))
    for x in gs + us: a(f'v_cvt_pk_bf16_f32 v{x}, v{x}, v{x}')
    for x in gs + us: a(f'v_lshlrev_b32 v{x}, 16, v{x}')
    c1 = -2 * 0.7978845608028654 * 1.4426950408889634
    a(f'v_mov_b32 v16, {f2u(c1)}\ns_mov_b32 s11, {f2u(c1*0.044715)}')
    for t in range(3): a(f'v_mul_f32 v{10+t}, v{gs[t]}, v{gs[t]}')
    for t in range(3): a(f'v_fma_f32 v{10+t}, v{10+t}, s11, v16')
    for t in range(3): a(f'v_mul_f32 v{10+t}, v{10+t}, v{gs[t]}')
    for t in range(3): a(f'v_exp_f32 v{10+t}, v{10+t}')
    for t in range(3): a(f'v_add_f32 v{10+t}, 1.0, v{10+t}')
    for t in range(3): a(f'v_rcp_f32 v{10+t}, v{10+t}')
    for t in range(3): a(f'v_mul_f32 v{10+t}, v{10+t}, v{gs[t]}')
    for t in range(3): a(f'v_cvt_pk_bf16_f32 v{10+t}, v{10+t}, v{10+t}')
    for t in range(3): a(f'v_lshlrev_b32 v{10+t}, 16, v{10+t}')
    for t in range(3): a(f'v_mul_f32 v{10+t}, v{10+t}, v{us[t]}')
    for t in range(3): a(f'v_mov_b32_dpp v{13+t}, v{10+t} row_ror:8 row_mask:0xf bank_mask:0xf')
    for t in range(3): a(f'v_cvt_pk_bf16_f32 v{10+t}, v{10+t}, v{13+t}')
    a('s_mov_b32 s11, 0x05040100\ns_mov_b32 s12, 0x07060302')
    a('v_mov_b32 v16, 0\nv_mov_b32 v17, 0\nv_mov_b32 v18, 0\nv_mov_b32 v19, 0\ns_waitcnt vmcnt(0)')
    for i in range(24):
        a(f'v_perm_b32 v{WDR-2+2*i}, v{WDR+2*i+1}, v{WDR+2*i}, s11\nv_perm_b32 v{WDR-1+2*i}, v{WDR+2*i+1}, v{WDR+2*i}, s12')
    for i in range(24):
        c = 2 * (i & 1)
        a(f'v_dot2c_f32_bf16_dpp v{16+c}, v{10+i//8}, v{WDR-2+2*i} row_newbcast:{i%8} row_mask:0xf bank_mask:0xf')
        a(f'v_dot2c_f32_bf16_dpp v{17+c}, v{10+i//8}, v{WDR-1+2*i} row_newbcast:{i%8} row_mask:0xf bank_mask:0xf')
    a(f'v_lshlrev_b32 v9, 3, v1\nv_pk_add_f32 v[16:17], v[16:17], v[18:19]\nds_write_b64 v9, v[16:17] offset:{L_F+4096}')
    stamp(7)
    a(f'v_mov_b32 v9, 0\ns_mov_b32 s13, {P["spin"]*8}')
    a('L_pollm:')
    for u in range(4): a(f'ds_read_b128 {vr(24+4*u,4)}, v9 offset:{L_M+16*u}')
    a('s_sub_u32 s13, s13, 1\ns_cbranch_scc1 L_pollmx\ns_waitcnt lgkmcnt(0)')
    a('v_max3_u32 v10, v25, v27, v29\nv_max3_u32 v11, v31, v33, v35\nv_max3_u32 v10, v10, v37, v39\nv_max_u32 v10, v10, v11')
    a('v_cmp_eq_u32 vcc, -1, v10\ns_cbranch_vccz L_pollmx\ns_sleep 8\ns_branch L_pollm')
    a('L_pollmx:')
    a('v_max3_f32 v10, v24, v26, v28\nv_max3_f32 v11, v30, v32, v34\nv_max3_f32 v10, v10, v36, v38\nv_max_f32 v10, v10, v11')
    for u in range(8): a(f'v_sub_f32 v{24+2*u}, v{24+2*u}, v10')
    for u in range(8): a(f'v_exp_f32 v{24+2*u}, v{24+2*u}')
    a('v_mul_f32 v11, v24, v25')
    for u in range(1, 8): a(f'v_fmac_f32 v11, v{24+2*u}, v{25+2*u}')
    a('v_and_b32 v9, 7, v1\nv_cmp_eq_u32 vcc, 6, v9\nv_mov_b32 v14, 0\nv_mov_b32 v15, 0')
    a('v_cndmask_b32 v12, 0, v10, vcc\nv_cndmask_b32 v13, 0, v11, vcc')
    for u in range(8): a(f'v_mov_b32 v{25+2*u}, v{24+2*u}')
    a(f'ds_read_b128 v[16:19], v0 offset:{L_F+4096}')
    a('s_mov_b32 exec_lo, 0x3f3f3f3f\ns_mov_b32 exec_hi, 0x3f3f3f3f\ns_waitcnt lgkmcnt(0)')
    stamp(8)
    a('s_waitcnt lgkmcnt(0)')
    bar()
    for u in range(8): a(f'ds_read_b128 {vr(B+4*u,4)}, v0 offset:{L_O+1024*u}')
    a('v_mov_b32 v20, 0\nv_mov_b32 v21, 0\nv_mov_b32 v22, 0\nv_mov_b32 v23, 0')
    for u in range(8):
        d = 12 if u % 2 == 0 else 20
        a(f's_waitcnt lgkmcnt({7-u})')
        a(f'v_pk_fma_f32 {vr(d,2)}, {vr(B+4*u,2)}, {vr(24+2*u,2)}, {vr(d,2)}\nv_pk_fma_f32 {vr(d+2,2)}, {vr(B+4*u+2,2)}, {vr(24+2*u,2)}, {vr(d+2,2)}')
    pk(12, 12, 20)
    a('s_mov_b64 exec, -1')
    a(f'buffer_store_dwordx4 v[12:15], v2, {sr(WS_)}, s7 offen sc1')
    stamp(9)
    a('s_mov_b64 exec, 0xfffff\ns_waitcnt lgkmcnt(0)')
    bar()
    for u in range(8): a(f'ds_read_b128 {vr(B+4*u,4)}, v0 offset:{L_F+512*u}')
    a('s_waitcnt lgkmcnt(6)'); pk(B, B, B+4)
    a('s_waitcnt lgkmcnt(4)'); pk(B+8, B+8, B+12); pk(B, B, 16)
    a('s_waitcnt lgkmcnt(2)'); pk(B+16, B+16, B+20); pk(B, B, B+8)
    a('s_waitcnt lgkmcnt(0)'); pk(B+24, B+24, B+28); pk(B, B, B+16); pk(B, B, B+24)
    a(f'buffer_store_dwordx4 {vr(B,4)}, v0, {sr(WS_)}, s8 offen sc1')
    stamp(10)
    a('L_fin:')
    if P['stamps']:
        a('s_mov_b64 exec, -1\ns_waitcnt vmcnt(0)')
        stamp(12)
        a('s_getreg_b32 s11, hwreg(HW_REG_XCC_ID)\ns_getreg_b32 s12, hwreg(HW_REG_HW_ID)\ns_waitcnt lgkmcnt(0)')
        a('v_mov_b32 v9, 0')
        for i in range(13): a(f'v_writelane_b32 v9, s{76+2*i}, {i}')
        a('v_writelane_b32 v9, s11, 14\nv_writelane_b32 v9, s12, 15')
        a(f's_mul_i32 s11, s2, 9\ns_add_u32 s11, s11, s6\ns_lshl_b32 s11, s11, 7\ns_add_u32 s11, s11, {ST}')
        a('s_mov_b64 exec, 0xffff')
        a(f'buffer_store_dword v9, v6, {sr(WS_)}, s11 offen')
    a('L_end:')
    body = a.finish()
    ref = open('cdna_kernels/%s.s.ref' % NAME).read().split('\n')
    head = ref[:13]
    out = '\n'.join(head) + f'\n; @launch grid=(256,1,1) block=(576,1,1) lds={L_END}\n'
    out += f'''.amdgcn_target "amdgcn-amd-amdhsa--gfx950"
.text
.globl {NAME}_kernel
.p2align 8
.type {NAME}_kernel,@function
{NAME}_kernel:
{body}
    s_endpgm
.section .rodata,"a"
.p2align 6
.amdhsa_kernel {NAME}_kernel
  .amdhsa_next_free_vgpr {max(NV, 136)}
  .amdhsa_next_free_sgpr 102
  .amdhsa_accum_offset {max(NV, 136)}
  .amdhsa_group_segment_fixed_size 0
  .amdhsa_kernarg_size 96
  .amdhsa_user_sgpr_count 2
  .amdhsa_user_sgpr_kernarg_segment_ptr 1
  .amdhsa_system_sgpr_workgroup_id_x 1
  .amdhsa_float_denorm_mode_32 3
.end_amdhsa_kernel
'''
    return out

if __name__ == '__main__':
    path = sys.argv[1]
    kw = {}
    for s in sys.argv[2:]:
        k, v = s.split('=', 1)
        try: v = json.loads(v)
        except Exception: pass
        kw[k] = v
    open(path, 'w').write(gen(**kw))
```

```python
import re

TRANS = ('v_exp_f32', 'v_log_f32', 'v_rcp_f32', 'v_rsq_f32', 'v_sqrt_f32', 'v_sin_f32', 'v_cos_f32')

def regs_of(tok):
    tok = tok.strip()
    tok = tok.lstrip('-')
    m = re.fullmatch(r'abs\((.*)\)', tok)
    if m: tok = m.group(1)
    m = re.fullmatch(r'([vsa])(\d+)', tok)
    if m: return {(m.group(1), int(m.group(2)))}
    m = re.fullmatch(r'([vsa])\[(\d+):(\d+)\]', tok)
    if m: return {(m.group(1), i) for i in range(int(m.group(2)), int(m.group(3)) + 1)}
    if tok == 'vcc': return {('s', 'vcc')}
    if tok == 'exec': return {('s', 'exec')}
    if tok == 'm0': return {('s', 'm0')}
    return set()

class Ins:
    def __init__(self, text):
        self.text = text
        t = text.split(';')[0].strip()
        self.label = t.endswith(':')
        self.op = t.split()[0] if t else ''
        rest = t[len(self.op):].strip()
        ops, depth, cur = [], 0, ''
        for ch in rest:
            if ch in '[(': depth += 1
            if ch in '])': depth -= 1
            if ch == ',' and depth == 0:
                ops.append(cur.strip()); cur = ''
            else: cur += ch
        if cur.strip(): ops.append(cur.strip())
        self.mods = ''
        if ops:
            parts = ops[-1].split(None, 1)
            ops[-1] = parts[0]
            self.mods = parts[1] if len(parts) > 1 else ''
        self.ops = ops
        op = self.op
        self.valu = op.startswith('v_') and not self.label
        self.vmem = op.startswith(('buffer_', 'global_'))
        self.ds = op.startswith('ds_')
        self.salu = op.startswith('s_') and not self.label
        self.dpp = op.endswith('_dpp')
        self.perml = op.startswith('v_permlane')
        self.dot = op.startswith('v_dot')
        self.trans = op.startswith(TRANS)
        self.mfma = op.startswith('v_mfma')
        self.rdlane = op.startswith(('v_readlane', 'v_readfirstlane'))
        self.w, self.r = set(), set()
        R = [regs_of(o) for o in ops]
        if self.valu:
            if self.perml:
                self.w = R[0] | R[1]; self.r = R[0] | R[1]
            else:
                self.w = set(R[0])
                for x in R[1:]: self.r |= x
                if op.startswith(('v_dot2c', 'v_fmac', 'v_writelane')) or self.dpp: self.r |= R[0]
                if op.startswith('v_cmpx'): self.w.add(('s', 'exec'))
        elif self.vmem:
            lds = ' lds' in (' ' + self.mods)
            if 'load' in op and not lds:
                self.w = set(R[0])
                for x in R[1:]: self.r |= x
            else:
                for x in R: self.r |= x
            self.ldsdma = lds
            self.wide_store = ('store' in op) and op.endswith(('x3', 'x4'))
            self.sdata = R[0] if op.startswith('buffer_') else (R[1] if len(R) > 1 else set())
        elif self.ds:
            if 'read' in op or 'swizzle' in op or 'permute' in op:
                self.w = set(R[0])
                for x in R[1:]: self.r |= x
            else:
                for x in R: self.r |= x
        elif self.salu:
            if op.startswith(('s_cmp', 's_cbranch', 's_branch', 's_waitcnt', 's_barrier', 's_nop', 's_endpgm', 's_setprio', 's_sleep')):
                for x in R: self.r |= x
            elif R:
                self.w = set(R[0])
                for x in R[1:]: self.r |= x

    def states(self):
        if self.label or not self.op or self.op.startswith('.'): return 0
        if self.op == 's_nop': return int(self.ops[0]) + 1
        return 1

def need(p, c):
    n = 0
    vw = {x for x in p.w if x[0] == 'v'}
    sw = {x for x in p.w if x[0] == 's'}
    if p.valu and p.mfma:
        same_c = c.valu and c.mfma and c.ops[3] == p.ops[0] and not (vw & (regs_of(c.ops[1]) | regs_of(c.ops[2])))
        if (vw & (c.r | c.w)) and not same_c: n = max(n, 8)
        if c.valu and not c.mfma and (regs_of(p.ops[3]) & c.w): n = max(n, 3)
    if p.valu and not p.mfma and c.valu and c.mfma and (vw & c.r): n = max(n, 3 if p.dot else 2)
    if p.valu:
        if c.valu and c.dpp and (vw & c.r): n = max(n, 2)
        if c.valu and c.perml and (vw & c.r): n = max(n, 2)
        if c.rdlane and (vw & c.r): n = max(n, 1)
        if p.trans and c.valu and (vw & c.r): n = max(n, 1)
        if p.dot and (vw & (c.r | c.w)):
            same = c.op.replace('_dpp', '') == p.op.replace('_dpp', '')
            if same:
                ab = set()
                for o in c.ops[1:3]: ab |= regs_of(o)
                if vw & ab: n = max(n, 3)
            else: n = max(n, 3)
        if sw:
            if c.valu and (sw & c.r): n = max(n, 4 if c.op.startswith(('v_readlane', 'v_writelane')) else 2)
            if c.valu and ('s', 'vcc') in sw and c.op.startswith(('v_cndmask', 'v_addc', 'v_div_fmas')): n = max(n, 4 if 'div' in c.op else 2)
            if c.vmem and (sw & c.r): n = max(n, 5)
            if ('s', 'exec') in sw:
                if c.dpp: n = max(n, 5)
                if c.rdlane or c.perml or c.op.startswith('v_writelane'): n = max(n, 4)
    if p.vmem and getattr(p, 'wide_store', False) and (p.sdata & c.w): n = max(n, 2)
    if p.salu and ('s', 'm0') in p.w and c.vmem and getattr(c, 'ldsdma', False): n = max(n, 1)
    return n

class Asm:
    def __init__(self): self.lines = []
    def __call__(self, text):
        for l in text.strip('\n').split('\n'):
            l = l.strip()
            if l: self.lines.append(l)
    def finish(self):
        out, hist = [], []
        for l in self.lines:
            c = Ins(l)
            if c.op and not c.label and not c.op.startswith('.'):
                dist, req = 0, 0
                for p in reversed(hist):
                    req = max(req, need(p, c) - dist)
                    dist += p.states()
                    if dist >= 9: break
                if req > 0:
                    nop = Ins(f's_nop {req - 1}')
                    out.append('    ' + nop.text); hist.append(nop)
            out.append(l if c.label else '    ' + l)
            hist.append(c)
            hist = hist[-16:]
        return '\n'.join(out)
```

```python
import sys, struct, json
from asmlib import Asm

NAME = 'parallel_sum__gqa_block_cached__glu_gated_geglu__decode'
def f2u(x): return '0x%08x' % struct.unpack('<I', struct.pack('<f', x))[0]

DEF = dict(kv='nt', w1='nt', wg='nt', w2='nt', stamps=0, spin=200000, outsc='', bar0=1, map=0, abl='', np2=1, np3=1,
           early=0, w0=0, wow=0, xf=1, wdl=0, q0=0, hold=0, qasc='', slow=0, lds=0, oe=0, ok=0, ov=0, b45=0, tprio=0, gap=0, amp=None, ampwg=0, skip=1, wol=4, nd=10, alias=1, red=3, epsc='', fp32=1, fpsc='sc1', p3sc='sc1', p2sc='sc1', vlast=2, cprio=3, gwait=0, qsl=0, kd=[], vd=[], init=2)

QB, OX, FP, SX, EP, ST, QA = 0, 524288, 786432, 917504, 950272, 1048576, 2097152
WS_USED = QA + 524288
L_P1, L_P2, L_X, L_R, L_Q, L_M, L_O, L_F, L_END = 0, 8192, 12288, 13568, 15360, 15744, 16384, 24576, 33792
TAGC = 0x9e3779b1
OOB = '0x7ff00000'

HEAD = """;
; Hand-offs between workgroups are 16-byte granules {3 values, tag} in d_ws. tag = (word found at d_ws + EP) + constant, so it
;   3. normalised o partials among the same 8                  4. column partials of the 32 heads -> reducer waves (head 0's workgroups)
; 1-3 use ordinary stores when the 8 workgroups report the same die id (shared L2) and written-through stores otherwise;
; 4 is always written through. All polls are bounded.
"""

def gen(**kw):
    P = dict(DEF); P.update(kw)
    ab = P['abl']
    a = Asm()
    ACC, Q, GA = 40, 40, 52
    SLOT = lambda i: 64 + 12 * i
    WR = 112
    vr = lambda b, n: f'v[{b}:{b+n-1}]'
    sr = lambda d: f's[{d}:{d+3}]'
    K_, WQ_, WG_, WU_, WS_, WO_, WD_, OUT_, X_ = 40, 44, 48, 52, 56, 64, 68, 72, 44
    STEP = 3072 * 64
    for k_ in ('fpsc', 'p3sc', 'p2sc'): P[k_] = P[k_].replace('+', ' ')
    def stamp(i):
        if P['stamps'] == 5 and i not in (0, 12): return
        if P['stamps'] or (P['hold'] and i == 0) or (P['amp'] and i in P['amp']): a(f's_memrealtime s[{76+2*i}:{77+2*i}]')
    def srd_hi(d, size): a(f's_mov_b32 s{d+2}, {size}\ns_mov_b32 s{d+3}, 0x20000')
    def srd_lo(d, ptr): a(f's_mov_b32 s{d}, s{ptr}\ns_mov_b32 s{d+1}, s{ptr+1}')
    def srd(d, ptr, size): srd_lo(d, ptr); srd_hi(d, size)
    DP = {0: 'quad_perm:[1,0,3,2]', 1: 'quad_perm:[2,3,0,1]', 2: 'row_half_mirror', 3: 'row_ror:8'}
    FULL = 'row_mask:0xf bank_mask:0xf'
    def allred(v, t, op, bits=(0,1,2,3,4,5)):
        vs = v if isinstance(v, list) else [v]
        ts = t if isinstance(t, list) else [t]
        for b in bits:
            if b < 4:
                for x in vs: a(f'{op}_dpp v{x}, v{x}, v{x} {DP[b]} {FULL}')
            else:
                n = 16 if b == 4 else 32
                for x, y in zip(vs, ts): a(f'v_mov_b32 v{y}, v{x}')
                for x, y in zip(vs, ts): a(f'v_permlane{n}_swap_b32 v{x}, v{y}')
                for x, y in zip(vs, ts): a(f'{op} v{x}, v{x}, v{y}')
    MSK = 140
    def tred(blocks, dsts):
        for b in blocks:
            for r in range(2): a(f'v_permlane32_swap_b32 v{b+r}, v{b+r+2}')
        for b, d in zip(blocks, dsts): a(f'v_add_f32_dpp v{d}, v{b+2}, v{b} row_ror:8 row_mask:0xf bank_mask:0x3')
        for b, d in zip(blocks, dsts): a(f'v_add_f32_dpp v{d}, v{b+1}, v{b+3} row_ror:8 row_mask:0xf bank_mask:0xc')
    def amat(dst, pp):
        for r in range(4): a(f'v_and_b32 v{dst+r}, v{pp}, v{MSK+r}')
    def axpy(acc, src, n, am):
        for j in range(n): a(f'v_mfma_f32_16x16x32_bf16 {vr(acc+4*j,4)}, {vr(am,4)}, {vr(src+4*j,4)}, {vr(acc+4*j,4)}')
    def elem(dst, tmp):
        a(f'v_bfe_u32 v{dst}, v1, 3, 1\nv_bfe_u32 v{tmp}, v1, 4, 1\nv_lshl_add_u32 v{dst}, v{tmp}, 2, v{dst}\nv_lshrrev_b32 v{tmp}, 5, v1\nv_lshl_add_u32 v{dst}, v{tmp}, 1, v{dst}')
    def ring_issue(slot):
        if P['gap']: a(f's_sleep {P["gap"]}')
        for t in range(3):
            a(f'buffer_load_dwordx4 {vr(SLOT(slot)+4*t,4)}, v2, {sr(K_)}, s12 offen offset:{t*128} {P["kv"]}')
        a(f's_add_u32 s12, s12, {STEP}')
    pk = lambda d, x, y: a(f'v_pk_add_f32 {vr(d,2)}, {vr(x,2)}, {vr(y,2)}\nv_pk_add_f32 {vr(d+2,2)}, {vr(x+2,2)}, {vr(y+2,2)}')
    pk2 = lambda d, x, y: a(f'v_pk_add_f32 {vr(d,2)}, {vr(x,2)}, {vr(y,2)}')
    def sum8(b, f, st=4):
        f(b, b, b+st); f(b+2*st, b+2*st, b+3*st); f(b+4*st, b+4*st, b+5*st); f(b+6*st, b+6*st, b+7*st)
        f(b, b, b+2*st); f(b+4*st, b+4*st, b+6*st); f(b, b, b+4*st)
    bar = lambda: a('s_barrier')
    def ldswait(lbl, off, sleep, cnt='s13'):
        a(f'v_mov_b32 v9, 0\ns_mov_b32 {cnt}, {P["spin"]*8}\n{lbl}:')
        a(f'ds_read_b32 v14, v9 offset:{off}\ns_sub_u32 {cnt}, {cnt}, 1\ns_cbranch_scc1 {lbl}x\ns_waitcnt lgkmcnt(0)')
        a(f'v_cmp_eq_u32 vcc, -1, v14\ns_cbranch_vccz {lbl}x\ns_sleep {sleep}\ns_branch {lbl}\n{lbl}x:')
    def third(dst, src, tmp):
        a(f'v_mul_u32_u24 v{tmp}, 171, v{src}\nv_lshrrev_b32 v{tmp}, 9, v{tmp}\nv_add_lshl_u32 v{dst}, v{src}, v{tmp}, 2')
    def faddr(base):
        a('v_lshlrev_b32 v9, 1, v1'); third(3, 9, 10); a('v_add_u32 v9, 1, v9'); third(4, 9, 10)
        a(f'v_add_u32 v3, {base}, v3\nv_add_u32 v4, {base}, v4')

    a('s_cmp_ge_u32 s2, 256\ns_cbranch_scc1 L_end')
    a('s_load_dwordx16 s[16:31], s[0:1], 0\ns_load_dwordx8 s[32:39], s[0:1], 64')
    stamp(0)
    a('v_lshrrev_b32 v4, 6, v0\nv_and_b32 v1, 63, v0')
    if P['map'] == 0: a('s_and_b32 s4, s2, 31\ns_lshr_b32 s5, s2, 5')
    else: a('s_lshr_b32 s4, s2, 3\ns_and_b32 s5, s2, 7')
    a('v_readfirstlane_b32 s6, v4')
    a('v_lshrrev_b32 v4, 3, v1\nv_and_b32 v15, 7, v1\nv_lshlrev_b32 v5, 4, v15')
    a('v_lshlrev_b32 v6, 2, v1\nv_lshlrev_b32 v0, 4, v1')
    a('s_lshl_b32 s3, s4, 3\ns_add_u32 s3, s3, s5')
    a('s_and_b32 s63, s4, 7\ns_lshl_b32 s63, s63, 2\ns_lshr_b32 s7, s4, 3\ns_add_u32 s63, s63, s7')
    def ctl_x():
        a(f's_setprio {P["cprio"]}')
        srd_hi(X_, 1280)
        a('s_waitcnt lgkmcnt(0)')
        srd_lo(X_, 16)
        for j in range(5): a(f'buffer_load_dword v{10+j}, v6, {sr(X_)}, 0 offen offset:{256*j}')
        if P['bar0']: bar()
    if P['xf']:
        a('s_cmp_lg_u32 s6, 8\ns_cbranch_scc1 L_str')
        ctl_x()
        a('s_branch L_ctl\nL_str:')
    else: a('s_cmp_eq_u32 s6, 8\ns_cbranch_scc1 L_ctl')
    a('s_mul_i32 s8, s5, 80\ns_lshl_b32 s7, s6, 3\ns_add_u32 s8, s8, s7')
    a('s_mul_i32 s14, s8, 12288\ns_mul_i32 s13, s4, 384\ns_add_u32 s14, s14, s13')
    a('s_mul_i32 s60, s8, 3072\ns_mul_i32 s13, s63, 96\ns_add_u32 s60, s60, s13')
    a('s_add_u32 s15, s14, 786432\ns_add_u32 s61, s60, 196608\ns_cmp_lt_u32 s6, 2\ns_cselect_b32 s9, 64, 0')
    a('v_mul_u32_u24 v7, 12288, v4\nv_add_u32 v7, v7, v5')
    a(f'v_mul_u32_u24 v10, 3072, v4\nv_add_u32 v10, v10, v5\nv_cmp_lt_u32 vcc, 5, v15\nv_mov_b32 v9, {OOB}')
    a('v_mul_u32_u24 v2, 384, v4\nv_add_u32 v2, v2, v5')
    a('v_cndmask_b32 v10, v10, v9, vcc')
    if 'u' in ab: a('v_mov_b32 v10, v9\nv_mov_b32 v11, v9')
    a('s_add_u32 s11, s7, s5\ns_mul_i32 s10, s4, 3145728\ns_mul_i32 s11, s11, 3072\ns_add_u32 s10, s10, s11\ns_mov_b32 s12, s10')
    srd_hi(K_, 100663296); srd_hi(WQ_, 7864320); srd_hi(WG_, 1966080); srd_hi(WU_, 1966080)
    a('s_waitcnt lgkmcnt(0)')
    srd_lo(WQ_, 22)
    for g in range(2):
        if g and P['skip']: a('s_cmp_ge_u32 s6, 2\ns_cbranch_scc1 L_g1')
        for t in range(3):
            a(f'buffer_load_dwordx4 {vr(SLOT(2+g)+4*t,4)}, v7, {sr(WQ_)}, s{14+g} offen offset:{t*128} {P["w1"]}')
        if g == 0: srd_lo(WG_, 28); srd_lo(WU_, 30)
        a(f'buffer_load_dwordx4 {vr(WR+8*g,4)}, v10, {sr(WG_)}, s{60+g} offen {P["wg"]}')
        a(f'buffer_load_dwordx4 {vr(WR+8*g+4,4)}, v10, {sr(WU_)}, s{60+g} offen {P["wg"]}')
    a('L_g1:')
    srd_lo(K_, 18)
    if P['bar0']: bar()
    for g in range(P['init']): ring_issue(g)
    srd(WS_, 38, WS_USED); srd(WO_, 24, 7864320); srd(OUT_, 34, 1280)
    a(f's_add_u32 s60, s38, {EP}\ns_addc_u32 s61, s39, 0\ns_load_dword s62, s[60:61], 0')
    for j in range(20): a(f'v_mov_b32 v{ACC+j}, 0')
    a('v_and_b32 v12, 1, v1\nv_lshlrev_b32 v12, 4, v12\nv_mov_b32 v13, 0xffff\nv_lshlrev_b32 v12, v12, v13\nv_lshrrev_b32 v13, 1, v15')
    for r in range(4): a(f'v_cmp_eq_u32 vcc, {r}, v13\nv_cndmask_b32 v{MSK+r}, 0, v12, vcc')
    a('v_add_u32 v8, s8, v4\nv_add_u32 v7, s9, v8\nv_lshlrev_b32 v8, 1, v8\nv_lshlrev_b32 v7, 1, v7')
    a('v_cmp_lt_u32 vcc, 39, v1\ns_lshl_b32 s11, s6, 10\nv_add_u32 v18, s11, v0\nv_lshrrev_b32 v19, 1, v18')
    a('v_cndmask_b32 v3, v6, v9, vcc')
    if 'o' in ab: a('v_mov_b32 v3, v9')
    bar()
    stamp(1)
    a(f'ds_read_u16 v10, v8 offset:{L_X}\nds_read_u16 v12, v7 offset:{L_X}\ns_waitcnt lgkmcnt(0)')
    a('v_lshl_or_b32 v10, v10, 16, v10\nv_lshl_or_b32 v12, v12, 16, v12')
    amat(24, 10); amat(28, 12)
    ni = 3 * P['init']
    if P['skip']:
        a(f's_cmp_ge_u32 s6, 2\ns_waitcnt vmcnt({ni})\ns_cbranch_scc1 L_g2'); axpy(ACC, SLOT(3), 3, 28); axpy(GA, WR+8, 2, 28)
        a('L_g2:'); axpy(ACC, SLOT(2), 3, 24); axpy(GA, WR, 2, 24)
    else:
        a(f's_waitcnt vmcnt({ni+5})'); axpy(ACC, SLOT(2), 3, 24); axpy(GA, WR, 2, 24)
        a(f's_waitcnt vmcnt({ni})'); axpy(ACC, SLOT(3), 3, 28); axpy(GA, WR+8, 2, 28)
    stamp(2)
    tred([ACC, ACC+4, ACC+8, GA, GA+4], [20, 21, 22, 16, 17])
    a(f'ds_write_b128 v18, v[20:23] offset:{L_P1}\nds_write_b64 v19, v[16:17] offset:{L_P2}\ns_waitcnt lgkmcnt(0)')
    bar()
    if P['init'] == 1:
        a('s_waitcnt vmcnt(0)'); ring_issue(1)
    a(f's_waitcnt vmcnt({P["w0"]})')
    pairs = [pr for q in range(4) for pr in ((6*q, 6*q+1), (6*q+3, 6*q+4), (6*q+2, 6*q+5))]
    pos = {r: WR + 2 + 2*i + k for i, pr in enumerate(pairs) for k, r in enumerate(pr)}
    a('s_mul_i32 s11, s4, 192\ns_mul_i32 s13, s6, 24\ns_add_u32 s11, s11, s13\ns_mul_i32 s11, s11, 1280')
    a('s_mul_i32 s9, s5, 160\ns_add_u32 s54, s11, s9')
    def wo_loads(vo, r0=0, r1=24):
        cur = None
        for r in sorted(x for pr in pairs[r0//2:r1//2] for x in pr):
            if r // 3 != cur:
                cur = r // 3; a(f's_add_u32 s11, s54, {cur * 3840}')
            a(f'buffer_load_dword v{pos[r]}, v{vo}, {sr(WO_)}, s11 offen offset:{1280*(r%3)} {P["w2"]}')
    def wo_perm(r0=0, r1=24):
        for i in range(r0//2, r1//2):
            a(f'v_perm_b32 v{WR+2*i}, v{WR+3+2*i}, v{WR+2+2*i}, s52\nv_perm_b32 v{WR+2*i+1}, v{WR+3+2*i}, v{WR+2+2*i}, s53')
    a('s_mov_b32 s52, 0x05040100\ns_mov_b32 s53, 0x07060302')
    if P['wol']:
        srd_lo(WQ_, 20); srd_hi(WQ_, 100663296)
        for t in range(3): a(f'buffer_load_dwordx4 {vr(144+4*t,4)}, v2, {sr(WQ_)}, s10 offen offset:{t*128} {P["kv"]}')
        a('v_mov_b32 v27, v3')
        wo_loads(3, 0, 24 - P['nd'])
    else: wo_loads(3)
    a(f'v_mov_b32 v16, 0\nv_mov_b32 v17, 0\nv_mov_b32 v18, 0\nv_mov_b32 v19, 0\ns_add_u32 s62, s62, {TAGC:#x}')
    if P['alias']:
        a(f's_lshl_b32 s7, s4, 14\ns_lshl_b32 s8, s6, 7\ns_add_u32 s7, s7, s8\ns_add_u32 s7, s7, {QA}\ns_lshl_b32 s8, s6, 10')
        a('v_lshl_add_u32 v0, v4, 11, v5\ns_add_u32 s55, s62, 16')
    else:
        a(f's_lshl_b32 s7, s4, 13\ns_lshl_b32 s8, s6, 10\ns_add_u32 s7, s7, s8\ns_add_u32 s7, s7, {OX}\ns_mov_b32 s55, s62')
    elem(4, 9)
    for t in range(3):
        a(f'v_lshl_add_u32 v9, v15, 3, v4\nv_add_u32 v9, {64*t}, v9'); third(20+t, 9, 10); a(f'v_add_u32 v{20+t}, s8, v{20+t}')
    if P['red'] == 0:
        a('s_xor_b32 s63, s4, s5\ns_and_b32 s63, s63, 3\ns_or_b32 s63, s63, s6\ns_cmp_lt_u32 s4, 28\ns_cselect_b32 s63, s63, 1\ns_lshr_b32 s13, s4, 2')
    elif P['red'] == 1:
        a('s_xor_b32 s63, s4, s5\ns_and_b32 s63, s63, 7\ns_lshr_b32 s13, s6, 1\ns_or_b32 s63, s63, s13')
        a('s_lshr_b32 s13, s4, 3\ns_lshl_b32 s13, s13, 1\ns_and_b32 s14, s6, 1\ns_add_u32 s13, s13, s14\ns_cmp_lt_u32 s13, 7\ns_cselect_b32 s63, s63, 1')
    else:
        a({2: 's_xor_b32 s63, s4, s5', 3: 's_xor_b32 s63, s4, %d' % P.get('rh', 0), 4: 's_and_b32 s63, s5, 3\ns_lshl_b32 s63, s63, 3\ns_xor_b32 s63, s63, s4',
           5: 's_and_b32 s63, s5, 3\ns_lshl_b32 s63, s63, 3\ns_and_b32 s13, s5, 4\ns_add_u32 s63, s63, s13\ns_xor_b32 s63, s63, s4',
           6: 's_and_b32 s63, s5, 3\ns_lshl_b32 s63, s63, 3\ns_lshr_b32 s13, s5, 2\ns_mul_i32 s13, s13, 6\ns_add_u32 s63, s63, s13\ns_xor_b32 s63, s63, s4'}[P['red']])
        a('s_mov_b32 s13, s6\ns_cmp_lt_u32 s13, 7\ns_cselect_b32 s63, s63, 1')
    a(f's_lshl_b32 s14, s13, 6\ns_lshl_b32 s15, s5, 9\ns_add_u32 s14, s14, s15\ns_add_u32 s14, s14, {FP}\ns_add_u32 s15, s14, 65536')
    a('s_mul_i32 s13, s13, 12\nv_and_b32 v9, 3, v1\nv_lshrrev_b32 v7, 2, v1\nv_lshlrev_b32 v7, 12, v7\nv_lshl_add_u32 v7, v9, 4, v7')
    a('v_mul_u32_u24 v9, 3, v9\nv_lshrrev_b32 v10, 4, v1\nv_add3_u32 v9, v9, v10, s13\nv_lshlrev_b32 v23, 1, v9')
    a('v_cmp_gt_u32 vcc, 80, v9\ns_mov_b32 s48, 0x000f000f\ns_mov_b32 s49, 0x0000000f\ns_and_b64 s[48:49], s[48:49], vcc')
    a(f'v_add_u32 v9, s9, v23\nds_read_u16 v8, v9 offset:{L_R}')
    faddr('s8')
    a(f's_waitcnt vmcnt({P["wow"]}) lgkmcnt(0)')
    ring_issue(2)
    a('v_lshlrev_b32 v8, 16, v8\ns_mov_b32 s8, 0\ns_waitcnt vmcnt(3)')
    wo_perm(0, 24 - P['nd'] if P['wol'] else 24)
    a('s_waitcnt vmcnt(0)')
    ring_issue(3)
    if P['oe'] or P['ok'] or P['ov']: a('s_getreg_b32 s55, hwreg(HW_REG_XCC_ID)\ns_and_b32 s55, s55, 15')
    stamp(5)
    ldswait('L_waitq', L_M+64, P.get('sq', 2))
    stamp(6)
    for t in range(3): a(f'ds_read_b128 {vr(Q+4*t,4)}, v5 offset:{L_Q+128*t}')
    if P.get('sp'): a(f's_setprio {P["sp"]}')
    a('s_waitcnt lgkmcnt(0)\ns_branch L_k0')
    a('L_kloop:')
    for jj in range(4):
        if P['ok'] and jj == 0: a(f's_waitcnt vmcnt(3)\ns_lshl_b32 s11, s8, 3\ns_add_u32 s11, s11, s55\ns_lshr_b32 s11, {P["ok"]}, s11\ns_bitcmp1_b32 s11, 0\ns_cbranch_scc1 L_kb')
        if jj == 1 and P['wol']:
            a('s_cbranch_scc0 L_kn')
            for r in range(0, 12, 2): a(f'v_pk_mov_b32 {vr(SLOT(0)+r,2)}, {vr(144+r,2)}, {vr(144+r,2)} op_sel:[0,1]')
            a(f's_add_u32 s12, s12, {STEP}\ns_branch L_k1\nL_kn:')
        a(f's_waitcnt vmcnt({3 if jj in P["kd"] else 0})')
        if jj == 0: a('L_kb:')
        ring_issue((jj + 3) % 4)
        a(f'L_k{jj}:')
        if jj == 0: a(f's_cmp_eq_u32 s8, 3\ns_cselect_b32 s{K_}, s20, s{K_}\ns_cselect_b32 s{K_+1}, s21, s{K_+1}\ns_cselect_b32 s12, s10, s12')
        for j in range(4):
            for t in range(3):
                c = '0' if j == 0 else f'v{10+t}'
                a(f'v_dot2_f32_bf16 v{10+t}, v{SLOT(jj)+4*t+j}, v{Q+4*t+j}, {c}')
        a('v_cmp_eq_u32 vcc, 0, v15\nv_cmp_eq_u32 s[60:61], -8, v15\nv_add_u32 v15, -1, v15')
        a('v_add_f32 v10, v10, v11\nv_add_f32 v10, v10, v12')
        allred(10, None, 'v_add_f32', bits=(0, 1, 2))
        a('v_cndmask_b32 v24, v24, v10, vcc\nv_cndmask_b32 v25, v25, v10, s[60:61]')
    a('s_add_u32 s8, s8, 1\ns_cmp_lt_u32 s8, 4\ns_cbranch_scc1 L_kloop')
    stamp(7)
    if P['oe']: a(f's_lshr_b32 s11, {P["oe"]}, s55\ns_bitcmp1_b32 s11, 0\ns_cbranch_scc1 L_early')
    if not P['early']: a('s_waitcnt vmcnt(0)')
    a('L_early:')
    ring_issue(3)
    a(f'v_cvt_pk_bf16_f32 v24, v24, v25\ns_mov_b32 s11, {f2u(192 ** -0.5)}\nv_and_b32 v25, 0xffff0000, v24\nv_lshlrev_b32 v24, 16, v24')
    a('v_mul_f32 v24, s11, v24\nv_mul_f32 v25, s11, v25\nv_cvt_pk_bf16_f32 v24, v24, v25\nv_and_b32 v25, 0xffff0000, v24\nv_lshlrev_b32 v24, 16, v24')
    a(f'v_max_f32 v10, v24, v25\ns_mov_b32 s11, {f2u(1.4426950408889634)}')
    allred(10, 11, 'v_max_f32')
    a('v_mul_f32 v10, s11, v10')
    a('v_fma_f32 v24, v24, s11, -v10\nv_fma_f32 v25, v25, s11, -v10\nv_exp_f32 v24, v24\nv_exp_f32 v25, v25')
    for j in range(12): a(f'v_mov_b32 v{ACC+j}, 0')
    a('v_add_f32 v11, v24, v25\nv_cvt_pk_bf16_f32 v24, v24, v24\nv_cvt_pk_bf16_f32 v25, v25, v25')
    allred(11, 12, 'v_add_f32')
    a(f's_lshl_b32 s11, s6, 3\nv_mov_b32 v9, s11\ns_mov_b32 s8, 0\ns_mov_b32 s13, {P["spin"]}')
    a(f'ds_write_b64 v9, v[10:11] offset:{L_M}')
    stamp(8)
    a('s_branch L_v0')
    def pbc(x, j):
        a(f'v_mov_b32_dpp v26, v24 row_newbcast:{j} row_mask:0xf bank_mask:0x3\nv_mov_b32_dpp v26, v24 row_newbcast:{j+8} row_mask:0xf bank_mask:0xc')
        amat(x, 26)
    assert P['wol'] == 4 and P['vlast'] == 2 and P['skip']
    a('L_vloop:')
    for jj in range(4):
        if jj == 0: a('s_cmp_eq_u32 s8, 3\ns_cbranch_scc1 L_vb0')
        if jj == 1: a('s_cmp_eq_u32 s8, 3\ns_cbranch_scc1 L_last')
        if jj == 3: a('s_cmp_eq_u32 s8, 2\ns_cbranch_scc1 L_vb3')
        a('s_waitcnt vmcnt(0)')
        if jj in (0, 3): a(f'L_vb{jj}:')
        ring_issue((jj + 3) % 4)
        if jj == 0:
            a('L_v0:')
            pbc(28, 0)
        axpy(ACC, SLOT(jj), 3, 28 + 4*(jj & 1))
        if jj < 3: pbc(28 + 4*((jj + 1) & 1), jj + 1)
    a(f'v_mov_b32_dpp v24, v24 row_shl:4 {FULL} bound_ctrl:0')
    a('s_add_u32 s8, s8, 1\ns_cmp_lg_u32 s8, 2\ns_cbranch_scc1 L_vloop')
    a(f'v_mov_b32 v24, v25\nds_write_b32 v16, v16 offset:{L_M+68}\ns_branch L_vloop')
    if P['wol'] >= 3:
        nd = P['nd']
        a('; ---- all V groups of the workgroup are requested: the rest of wo follows them, then the last three groups are consumed ----\nL_last:')
        pbc(28, 2); pbc(36, 3)
        if P['wol'] == 4: bar()
        if P['wol'] == 3: a('s_waitcnt vmcnt(6)')
        if P.get('lw') is not None: a(f's_waitcnt vmcnt({P["lw"]})')
        wo_loads(27, 24 - nd)
        for jj in (1, 2, 3):
            a(f's_waitcnt vmcnt({nd + 3 * (3 - jj)})')
            axpy(ACC, SLOT(jj), 3, {1: 32, 2: 28, 3: 36}[jj])
    def poller(name, sets, loads, check, first):
        n, k = len(sets), len(loads(sets[0]))
        for x in sets[:-1]: a('\n'.join(loads(x)))
        a(f'{name}:')
        for i_, x in enumerate(sets):
            a('\n'.join(loads(sets[i_-1])))
            if i_ == 0: a(f'{name}_w:')
            a(f's_waitcnt vmcnt({k*(n-1)})')
            check(x)
            a(f's_cbranch_vccz {name}_ok{i_}')
        pm = n == 1 and name[-1] in str(P.get('pm', ''))
        if pm: a('s_mov_b64 exec, vcc')
        sl = P.get('sl' + name[-1], 0)
        if sl: a(f's_sleep {sl}')
        a(f's_sub_u32 s13, s13, 1\ns_cbranch_scc0 {name}')
        for i_, x in enumerate(sets):
            a(f'{name}_ok{i_}:')
            if pm: a('s_mov_b64 exec, -1')
            first(x)
            if i_ < n - 1: a(f's_branch {name}_done')
        a(f'{name}_done:')
    stamp(9)
    if 't' in ab: a('s_branch L_fin')
    tred([ACC, ACC+4, ACC+8], [12, 13, 14])
    for t in range(3): a(f'ds_write_b32 v{20+t}, v{12+t} offset:{L_O}')
    if P['wol'] == 1: wo_loads(27, 24 - P['nd'])
    a('s_waitcnt lgkmcnt(0)')
    bar()
    if P['wol'] == 2: wo_loads(27, 24 - P['nd'])
    if P['wol']:
        assert P['np2'] == 1
        a(f's_waitcnt vmcnt(0)\nbuffer_load_dwordx4 v[28:31], v0, {sr(WS_)}, s7 offen {P["p2sc"]}')
        wo_perm(24 - P['nd'])
        a('s_branch L_p2_w')
    if P['b45']: bar()
    def first2(x):
        a(f'v_mov_b32 v{x+3}, v{x+2}\nv_permlane32_swap_b32 v{x}, v{x+1}\nv_add_f32 v12, v{x}, v{x+1}')
        a(f'v_permlane32_swap_b32 v{x+2}, v{x+3}\nv_add_f32 v13, v{x+2}, v{x+3}')
    poller('L_p2', [28 + 4*i_ for i_ in range(P['np2'])], lambda x: [f'buffer_load_dwordx4 {vr(x,4)}, v0, {sr(WS_)}, s7 offen {P["p2sc"]}'],
           lambda x: a(f'v_cmp_ne_u32 vcc, s55, v{x+3}'), first2)
    stamp(10)
    allred([12, 13], [14, 15], 'v_add_f32', bits=(4, 3))
    a(f'v_mov_b32 v14, v12\nv_mov_b32_dpp v15, v13 {DP[0]} {FULL}\nv_permlane32_swap_b32 v12, v14')
    a('v_cvt_pk_bf16_f32 v13, v13, v15\nv_cvt_pk_bf16_f32 v12, v12, v14')
    for n_, i in enumerate([2, 5, 8, 11, 0, 1, 3, 4, 6, 7, 9, 10]):
        src, lane = (13, 2 * (i // 3)) if i % 3 == 2 else (12, 2 * (i // 3) + i % 3)
        c = 2 * (n_ & 1)
        a(f'v_dot2c_f32_bf16_dpp v{16+c}, v{src}, v{WR+2*i} row_newbcast:{lane} {FULL}')
        a(f'v_dot2c_f32_bf16_dpp v{17+c}, v{src}, v{WR+2*i+1} row_newbcast:{lane} {FULL}')
    a(f's_mov_b32 s13, {P["spin"]}\ns_cmp_lg_u32 s63, 0')
    a('v_pk_add_f32 v[16:17], v[16:17], v[18:19]')
    a(f'ds_write_b32 v3, v16 offset:{L_F}\nds_write_b32 v4, v17 offset:{L_F}\ns_waitcnt lgkmcnt(0)')
    bar()
    a('s_cbranch_scc1 L_fin')
    a("; reducer waves: sum the 32 heads' column partials, add the residual, store")
    poller('L_p3', [64 + 8*i_ for i_ in range(P['np3'])],
           lambda x: [f'buffer_load_dwordx4 {vr(x,4)}, v7, {sr(WS_)}, s14 offen {P["p3sc"]}', f'buffer_load_dwordx4 {vr(x+4,4)}, v7, {sr(WS_)}, s15 offen {P["p3sc"]}'],
           lambda x: a(f'v_cmp_ne_u32 vcc, s62, v{x+3}\nv_cmp_ne_u32 s[60:61], s62, v{x+7}\ns_or_b64 vcc, vcc, s[60:61]'), lambda x: pk(12, x, x+4))
    stamp(11)
    a('v_permlane32_swap_b32 v12, v14\nv_permlane32_swap_b32 v13, v15\nv_pk_add_f32 v[12:13], v[12:13], v[14:15]')
    a('v_permlane16_swap_b32 v12, v13\nv_add_f32 v12, v12, v13')
    a(f'v_add_f32_dpp v12, v12, v12 row_ror:4 {FULL}\nv_add_f32_dpp v12, v12, v12 row_ror:8 {FULL}')
    a('v_add_f32 v12, v12, v8\nv_cvt_pk_bf16_f32 v12, v12, v12')
    a('s_mov_b64 exec, s[48:49]')
    a(f'buffer_store_short v12, v23, {sr(OUT_)}, s9 offen {P["outsc"]}')
    a('s_or_b32 s11, s5, s6\ns_cbranch_scc1 L_fin')
    a(f's_mov_b64 exec, 1\nv_mov_b32 v9, s62\ns_mov_b32 s11, {EP}')
    a(f'buffer_store_dword v9, off, {sr(WS_)}, s11 {P["epsc"]}')
    a('s_branch L_fin')
    a('L_ctl:')
    if not P['xf']: ctl_x()
    a('v_mov_b32 v20, -1')
    a(f's_lshl_b32 s7, s4, 13\ns_lshl_b32 s12, s5, 7\ns_add_u32 s7, s7, s12\ns_add_u32 s7, s7, {OX}')
    a(f's_lshl_b32 s8, s3, 9\ns_add_u32 s8, s8, {FP}')
    a(f'v_lshl_add_u32 v2, v4, 10, v5\nds_write_b32 v6, v20 offset:{L_M}')
    a(f's_add_u32 s60, s38, {EP}\ns_addc_u32 s61, s39, 0\ns_load_dword s62, s[60:61], 0')
    srd(WS_, 38, WS_USED); srd(WD_, 32, 1966080)
    a('s_getreg_b32 s55, hwreg(HW_REG_XCC_ID)\ns_and_b32 s55, s55, 15')
    a('s_waitcnt vmcnt(0)')
    stamp(1)
    for j in range(5): a(f'v_lshlrev_b32 v{24+2*j}, 16, v{10+j}\nv_and_b32 v{25+2*j}, 0xffff0000, v{10+j}')
    pk2(16, 24, 26); pk2(18, 28, 30); pk2(16, 16, 32); pk2(16, 16, 18)
    a('v_add_f32 v17, v16, v17')
    allred(17, 18, 'v_add_f32')
    a(f'v_mul_f32 v17, {f2u(1/640)}, v17')
    for j in range(10): a(f'v_sub_f32 v{34+j}, v{24+j}, v17')
    a('v_pk_mul_f32 v[18:19], v[34:35], v[34:35]')
    for j in range(1, 5): a(f'v_pk_fma_f32 v[18:19], {vr(34+2*j,2)}, {vr(34+2*j,2)}, v[18:19]')
    a('v_add_f32 v18, v18, v19\nv_cvt_pk_bf16_f32 v17, v17, v17\nv_lshlrev_b32 v17, 16, v17')
    allred(18, 19, 'v_add_f32')
    a(f'v_mul_f32 v18, {f2u(1/640)}, v18')
    a('v_cvt_pk_bf16_f32 v18, v18, v18\nv_lshlrev_b32 v18, 16, v18')
    a(f'v_add_f32 v18, {f2u(1e-5)}, v18\nv_cvt_pk_bf16_f32 v18, v18, v18\nv_lshlrev_b32 v18, 16, v18')
    a('v_sqrt_f32 v18, v18')
    for j in range(10): a(f'v_sub_f32 v{24+j}, v{24+j}, v17')
    a('v_cvt_pk_bf16_f32 v18, v18, v18\nv_lshlrev_b32 v18, 16, v18\nv_rcp_f32 v20, v18\nv_xor_b32 v18, 0x80000000, v18\nv_mov_b32 v19, v18')
    for j in range(5): a(f'v_cvt_pk_bf16_f32 v{44+j}, v{24+2*j}, v{25+2*j}')
    a('v_mov_b32 v21, v20')
    for j in range(5): a(f'v_lshlrev_b32 v{24+2*j}, 16, v{44+j}\nv_and_b32 v{25+2*j}, 0xffff0000, v{44+j}')
    for j in range(5): a(f'v_pk_mul_f32 {vr(34+2*j,2)}, {vr(24+2*j,2)}, v[20:21]')
    for j in range(5): a(f'v_pk_fma_f32 {vr(24+2*j,2)}, {vr(34+2*j,2)}, v[18:19], {vr(24+2*j,2)}')
    for j in range(5): a(f'v_pk_fma_f32 {vr(34+2*j,2)}, {vr(24+2*j,2)}, v[20:21], {vr(34+2*j,2)}')
    for j in range(5): a(f'v_cvt_pk_bf16_f32 v{44+j}, v{34+2*j}, v{35+2*j}')
    for j in range(5): a(f'ds_write_b32 v6, v{44+j} offset:{L_X+256*j}')
    a('s_waitcnt lgkmcnt(0)')
    bar()
    stamp(2)
    for j in range(5): a(f'ds_write_b32 v6, v{10+j} offset:{L_R+256*j}')
    a(f's_add_u32 s62, s62, {TAGC:#x}\ns_add_u32 s54, s62, s55')
    a(f's_lshl_b32 s53, s3, 11\ns_add_u32 s52, s53, {QA}\ns_lshl_b32 s14, s4, 14\ns_add_u32 s14, s14, {QA}\ns_mov_b32 s13, {P["spin"]}')
    elem(7, 9)
    a('v_lshl_add_u32 v7, v7, 1, v5\nv_lshrrev_b32 v21, 1, v0')
    a('s_mul_i32 s9, s63, 61440\ns_mul_i32 s12, s5, 160\ns_add_u32 s9, s9, s12')
    a(f'v_cmp_lt_u32 vcc, 39, v1\nv_mov_b32 v9, {OOB}\nv_cndmask_b32 v8, v6, v9, vcc')
    if 'd' in ab: a('v_mov_b32 v8, v9')
    faddr(8192)
    a('s_waitcnt lgkmcnt(0)')
    bar()
    G, G2, WDR = 96, 128, 42
    for u in range(8): a(f'ds_read_b128 {vr(G+4*u,4)}, v0 offset:{L_P1+1024*u}')
    for u in range(8): a(f'ds_read_b64 {vr(G2+4*u,2)}, v21 offset:{L_P2+512*u}')
    a('v_mov_b32 v30, s54\nv_mov_b32 v31, s54\ns_waitcnt lgkmcnt(8)')
    sum8(G, pk)
    a(f'v_mov_b32 v24, v{G}\nv_mov_b32 v25, v{G+1}\nv_mov_b32 v26, v{G+2}\nv_mov_b32 v27, s54\ns_waitcnt lgkmcnt(0)')
    def publish(sb, sc):
        a(f'buffer_store_dwordx4 v[24:27], v0, {sr(WS_)}, {sb} offen {sc}\nbuffer_store_dwordx4 v[28:31], v0, {sr(WS_)}, {sb} offen offset:1024 {sc}')
    a(f'buffer_store_dwordx4 v[24:27], v0, {sr(WS_)}, s52 offen {P["qasc"]}')
    sum8(G2, pk2)
    a(f'v_mov_b32 v28, v{G2}\nv_mov_b32 v29, v{G2+1}\nbuffer_store_dwordx4 v[28:31], v0, {sr(WS_)}, s52 offen offset:1024 {P["qasc"]}')
    stamp(3)
    def wdown():
        for r in range(48):
            a(f'buffer_load_dword v{WDR+r}, v8, {sr(WD_)}, s9 offen offset:{1280*(r%3)} {P["w2"]}')
            if r % 3 == 2 and r < 47: a('s_add_u32 s9, s9, 3840')
    if not P['wdl']: wdown()
    a(f's_waitcnt vmcnt({P["gwait"]})')
    if P['q0']: a(f's_sleep {P["q0"]}')
    a('s_branch L_q1')
    a('L_pollq:')
    if P['qsl']: a(f's_sleep {P["qsl"]}')
    per = P.get('per', 2)
    assert P['spin'] % per == 0
    a(f's_and_b32 s12, s13, {per-1}\ns_cselect_b32 s11, {QA - QB}, 0\ns_lshl_b32 s14, s4, 14\ns_add_u32 s14, s14, s11')
    a(f's_cmp_lg_u32 s13, {P["spin"] - per + 1}\ns_cbranch_scc1 L_q1')
    publish('s53', 'sc1')
    a('L_q1:\ns_mov_b32 s11, s14')
    for u in range(8):
        a(f'buffer_load_dwordx4 {vr(G+4*u,4)}, v0, {sr(WS_)}, s11 offen offset:{2048*(u%2)} sc1')
        a(f'buffer_load_dwordx4 {vr(G2+4*u,4)}, v0, {sr(WS_)}, s11 offen offset:{2048*(u%2)+1024} sc1')
        if u % 2 and u < 7: a('s_add_u32 s11, s11, 4096')
    a('s_sub_u32 s13, s13, 1\ns_cbranch_scc1 L_pollqx\ns_waitcnt vmcnt(0)')
    for u in range(16): a(f'v_subrev_u32 v{G+4*u+3}, s62, v{G+4*u+3}')
    a(f'v_or3_b32 v9, v{G+3}, v{G+7}, v{G+11}\nv_or3_b32 v10, v{G+15}, v{G+19}, v{G+23}')
    for u in range(6, 16, 2): a(f'v_or3_b32 v{9 + (u//2) % 2}, v{9 + (u//2) % 2}, v{G+4*u+3}, v{G+4*u+7}')
    a('v_or_b32 v9, v9, v10\nv_cmp_lt_u32 vcc, 15, v9\ns_cbranch_vccnz L_pollq')
    a('L_pollqx:')
    stamp(4)
    for u in range(8): a(f'v_xor_b32 v{32+u}, s55, v{G+4*u+3}')
    sum8(G, pk)
    a(f'v_cvt_pk_bf16_f32 v10, v{G}, v{G+1}\nv_cvt_pk_bf16_f32 v11, v{G+2}, v{G+2}\nv_mov_b32 v9, 0')
    a(f'ds_write_b16 v7, v10 offset:{L_Q}\nds_write_b16_d16_hi v7, v10 offset:{L_Q+128}\nds_write_b16 v7, v11 offset:{L_Q+256}')
    a(f's_waitcnt lgkmcnt(0)\nds_write_b32 v9, v9 offset:{L_M+64}')
    if P.get('drop'): a('s_setprio 0')
    a('v_or3_b32 v9, v32, v33, v34\nv_or3_b32 v10, v35, v36, v37\nv_or3_b32 v9, v9, v38, v39\nv_or_b32 v9, v9, v10\nv_readfirstlane_b32 s10, v9')
    a('s_cmp_eq_u32 s10, 0\ns_cbranch_scc1 L_q2')
    publish('s53', 'sc1')
    a('s_waitcnt vmcnt(0)\nL_q2:')
    if P['slow']: a('s_mov_b32 s10, 1')
    if P['wdl']: wdown()
    sum8(G2, pk2)
    c1 = -2 * 0.7978845608028654 * 1.4426950408889634
    a(f'v_cvt_pk_bf16_f32 v10, v{G2}, v{G2+1}\nv_mov_b32 v16, {f2u(c1)}\ns_mov_b32 s11, {f2u(c1*0.044715)}')
    a('v_and_b32 v11, 0xffff0000, v10\nv_lshlrev_b32 v10, 16, v10\nv_mul_f32 v12, v10, v10\nv_fma_f32 v12, v12, s11, v16\nv_mul_f32 v12, v12, v10')
    a('v_exp_f32 v12, v12\nv_add_f32 v12, 1.0, v12\nv_rcp_f32 v12, v12\nv_mul_f32 v10, v10, v12')
    a('v_cvt_pk_bf16_f32 v10, v10, v10\nv_lshlrev_b32 v10, 16, v10\nv_mul_f32 v10, v10, v11')
    a(f'v_mov_b32_dpp v11, v10 row_ror:8 {FULL}\nv_cvt_pk_bf16_f32 v10, v10, v11')
    a('s_mov_b32 s11, 0x05040100\ns_mov_b32 s12, 0x07060302')
    for i in range(24): a(f'v_readlane_b32 s{16+i}, v10, {32*(i & 1) + 16*((i >> 1) & 1) + (i >> 2)}')
    a('v_mov_b32 v16, 0\nv_mov_b32 v17, 0\nv_mov_b32 v18, 0\nv_mov_b32 v19, 0\ns_waitcnt vmcnt(0)')
    for i in range(24):
        a(f'v_perm_b32 v{WDR-2+2*i}, v{WDR+2*i+1}, v{WDR+2*i}, s11\nv_perm_b32 v{WDR-1+2*i}, v{WDR+2*i+1}, v{WDR+2*i}, s12')
    for i in range(24):
        c = 2 * (i & 1)
        a(f'v_dot2c_f32_bf16 v{16+c}, s{16+i}, v{WDR-2+2*i}\nv_dot2c_f32_bf16 v{17+c}, s{16+i}, v{WDR-1+2*i}')
    a(f'v_pk_add_f32 v[16:17], v[16:17], v[18:19]\nds_write_b32 v3, v16 offset:{L_F}\nds_write_b32 v4, v17 offset:{L_F}')
    stamp(6)
    a(f'v_mov_b32 v9, 0\ns_mov_b32 s13, {P["spin"]*8}')
    a('L_pollm:')
    for u in range(4): a(f'ds_read_b128 {vr(24+4*u,4)}, v9 offset:{L_M+16*u}')
    a('s_sub_u32 s13, s13, 1\ns_cbranch_scc1 L_pollmx\ns_waitcnt lgkmcnt(0)')
    a('v_max3_u32 v10, v25, v27, v29\nv_max3_u32 v11, v31, v33, v35\nv_max3_u32 v10, v10, v37, v39\nv_max_u32 v10, v10, v11')
    a('v_cmp_eq_u32 vcc, -1, v10\ns_cbranch_vccz L_pollmx')
    a(f's_sleep {P.get("sm", 16)}\ns_branch L_pollm')
    a('L_pollmx:')
    stamp(7)
    a('v_max3_f32 v10, v24, v26, v28\nv_max3_f32 v11, v30, v32, v34\nv_max3_f32 v10, v10, v36, v38\nv_max_f32 v10, v10, v11')
    for u in range(8): a(f'v_sub_f32 v{24+2*u}, v{24+2*u}, v10')
    for u in range(8): a(f'v_exp_f32 v{24+2*u}, v{24+2*u}')
    a('v_mul_f32 v11, v24, v25')
    for u in range(1, 8): a(f'v_fmac_f32 v11, v{24+2*u}, v{25+2*u}')
    a(f'v_mov_b32 v12, s62\nv_mov_b32 v13, s62\ns_lshl_b32 s11, s3, 7\ns_add_u32 s11, s11, {SX}\ns_mov_b64 exec, 1')
    a(f's_cmp_eq_u32 s10, 0\ns_cbranch_scc0 L_sx1\nbuffer_store_dwordx4 v[10:13], off, {sr(WS_)}, s11\ns_branch L_sx2\nL_sx1:')
    a(f'buffer_store_dwordx4 v[10:13], off, {sr(WS_)}, s11 sc1\nL_sx2:\ns_mov_b64 exec, -1')
    ldswait('L_wait1', L_M+68, 16)
    a(f's_lshl_b32 s11, s4, 10\ns_add_u32 s11, s11, {SX}\nv_lshlrev_b32 v9, 3, v5\ns_mov_b32 s13, {P["spin"]}')
    a('L_polls:')
    a(f'buffer_load_dwordx4 v[12:15], v9, {sr(WS_)}, s11 offen sc1')
    a('s_sub_u32 s13, s13, 1\ns_cbranch_scc1 L_pollsx\ns_waitcnt vmcnt(0)')
    a('v_cmp_ne_u32 vcc, s62, v14\ns_cbranch_vccz L_pollsx\ns_sleep 8\ns_branch L_polls')
    a('L_pollsx:')
    a('v_mov_b32 v14, v12')
    allred(14, None, 'v_max_f32', bits=(0, 1, 2))
    a('v_sub_f32 v12, v12, v14\nv_sub_f32 v10, v10, v14\nv_exp_f32 v12, v12\nv_exp_f32 v10, v10\nv_mul_f32 v13, v13, v12')
    allred(13, None, 'v_add_f32', bits=(0, 1, 2))
    a('v_rcp_f32 v13, v13\nv_mul_f32 v10, v10, v13')
    for u in range(8): a(f'v_mul_f32 v{24+2*u}, v{24+2*u}, v10')
    for u in range(8): a(f'v_mov_b32 v{25+2*u}, v{24+2*u}')
    a(f'ds_read_b128 v[16:19], v0 offset:{L_F+8192}')
    for x in (12, 13, 14, 20, 21, 22): a(f'v_mov_b32 v{x}, 0')
    if P['alias']: a('s_add_u32 s11, s62, 16\nv_mov_b32 v15, s11\ns_mov_b32 s7, s52\nv_mov_b32 v2, v0')
    else: a('v_mov_b32 v15, s62')
    stamp(8)
    if 't' in ab: a('s_branch L_fin')
    if P.get('drop'): a('s_setprio 3')
    a('s_cmp_eq_u32 s10, 0\ns_waitcnt lgkmcnt(0)\nv_mov_b32 v19, s62')
    if P['wol'] == 4: bar()
    bar()
    B = 64
    for u in range(8): a(f'ds_read_b128 {vr(B+4*u,4)}, v0 offset:{L_O+1024*u}')
    for u in range(8):
        d = 12 if u % 2 == 0 else 20
        a(f's_waitcnt lgkmcnt({7-u})')
        a(f'v_pk_fma_f32 {vr(d,2)}, {vr(B+4*u,2)}, {vr(24+2*u,2)}, {vr(d,2)}\nv_fmac_f32 v{d+2}, v{B+4*u+2}, v{24+2*u}')
    a('v_pk_add_f32 v[12:13], v[12:13], v[20:21]\nv_add_f32 v14, v14, v22')
    a('s_cbranch_scc0 L_c2')
    a(f'buffer_store_dwordx4 v[12:15], v2, {sr(WS_)}, s7 offen\ns_branch L_c2x')
    a(f'L_c2:\nbuffer_store_dwordx4 v[12:15], v2, {sr(WS_)}, s7 offen sc1\nL_c2x:')
    if P['b45']: bar()
    stamp(9)
    a(('s_mov_b32 exec_hi, 0' if P['fp32'] else 's_mov_b64 exec, 0xfffffff') + '\ns_waitcnt lgkmcnt(0)')
    bar()
    for u in range(8): a(f'ds_read_b128 {vr(B+4*u,4)}, v0 offset:{L_F+1024*u}')
    pk3 = lambda d, x, y: a(f'v_pk_add_f32 {vr(d,2)}, {vr(x,2)}, {vr(y,2)}\nv_add_f32 v{d+2}, v{x+2}, v{y+2}')
    a('s_waitcnt lgkmcnt(6)'); pk3(B, B, B+4)
    a('s_waitcnt lgkmcnt(4)'); pk3(B+8, B+8, B+12); pk3(16, 16, B)
    a('s_waitcnt lgkmcnt(2)'); pk3(B+16, B+16, B+20); pk3(16, 16, B+8)
    a('s_waitcnt lgkmcnt(0)'); pk3(B+24, B+24, B+28); pk3(16, 16, B+16); pk3(16, 16, B+24)
    a(f'buffer_store_dwordx4 v[16:19], v0, {sr(WS_)}, s8 offen {P["fpsc"]}')
    if P.get('wb'): a(f's_cmp_lg_u32 s3, {P.get("rh", 0) * 8}\ns_cbranch_scc1 L_fin\nbuffer_wbl2 sc1')
    stamp(10)
    a('L_fin:')
    if P['stamps']:
        a('s_mov_b64 exec, -1\ns_waitcnt vmcnt(0)')
        stamp(12)
        if P['stamps'] == 5: a('s_waitcnt lgkmcnt(0)\ns_mov_b32 s94, s100')
        a('s_getreg_b32 s11, hwreg(HW_REG_XCC_ID)\ns_getreg_b32 s12, hwreg(HW_REG_HW_ID)\ns_waitcnt lgkmcnt(0)')
        a('v_mov_b32 v9, 0')
        for i in range(13): a(f'v_writelane_b32 v9, s{76+2*i}, {i}')
        a('v_writelane_b32 v9, s11, 14\nv_writelane_b32 v9, s12, 15')
        a(f's_mul_i32 s11, s2, 9\ns_add_u32 s11, s11, s6\ns_lshl_b32 s11, s11, 7\ns_add_u32 s11, s11, {ST}')
        a('s_mov_b64 exec, 0xffff')
        a(f'buffer_store_dword v9, v6, {sr(WS_)}, s11 offen')
    if P['hold']:
        a(f's_xor_b32 s11, s2, {P["ampwg"]}\ns_or_b32 s11, s11, s6\ns_cmp_lg_u32 s11, 0\ns_cbranch_scc1 L_end')
        if P['amp']: a(f's_waitcnt lgkmcnt(0)\ns_sub_u32 s74, s{76+2*P["amp"][1]}, s{76+2*P["amp"][0]}\ns_min_u32 s74, s74, 10000\ns_mul_i32 s74, s74, 10\ns_add_u32 s80, s74, {P["hold"]}')
        elif P['hold'] < 100: a(f's_waitcnt vmcnt(0)\ns_memrealtime s[78:79]\ns_waitcnt lgkmcnt(0)\ns_sub_u32 s80, s78, s76\ns_min_u32 s80, s80, 10000\ns_mul_i32 s80, s80, {P["hold"]}')
        else: a(f's_mov_b32 s80, {P["hold"]}')
        a('L_hold:\ns_memrealtime s[78:79]\ns_waitcnt lgkmcnt(0)\ns_sub_u32 s78, s78, s76\ns_cmp_lt_u32 s78, s80\ns_cbranch_scc1 L_hold')
    a('L_end:')
    body = a.finish()
    ref = open('cdna_kernels/%s.s.ref' % NAME).read().split('\n')
    out = '\n'.join(ref[:13]) + f'\n; @launch grid=(256,1,1) block=(576,1,1) lds={P["lds"] or L_END}\n'
    out += HEAD
    out += f'''.amdgcn_target "amdgcn-amd-amdhsa--gfx950"
.text
.globl {NAME}_kernel
.p2align 8
.type {NAME}_kernel,@function
{NAME}_kernel:
{body}
    s_endpgm
.section .rodata,"a"
.p2align 6
.amdhsa_kernel {NAME}_kernel
  .amdhsa_next_free_vgpr {P.get('nvg', 160)}
  .amdhsa_next_free_sgpr {P.get('nsg', 102 if (P['stamps'] or P['hold']) else 80)}
  .amdhsa_accum_offset {P.get('nvg', 160)}
  .amdhsa_group_segment_fixed_size 0
  .amdhsa_kernarg_size 96
  .amdhsa_user_sgpr_count 2
  .amdhsa_user_sgpr_kernarg_segment_ptr 1
  .amdhsa_system_sgpr_workgroup_id_x 1
  .amdhsa_float_denorm_mode_32 3
.end_amdhsa_kernel
'''
    return out

if __name__ == '__main__':
    kw = {}
    for s in sys.argv[2:]:
        k, v = s.split('=', 1)
        try: v = json.loads(v)
        except Exception: pass
        kw[k] = v
    open(sys.argv[1], 'w').write(gen(**kw))
```
